```python
import torch

def _softmax(x, axis=-1):
    return torch.softmax(x, dim=axis)
def _gelu(x):
    return torch.nn.functional.gelu(x, approximate="tanh")
def _silu(x):
    return torch.nn.functional.silu(x)
def _sigmoid(x):
    return torch.sigmoid(x)
def _layernorm(x, axis=-1, eps=1e-5):
    m = x.mean(dim=axis, keepdim=True)
    v = x.var(dim=axis, keepdim=True, unbiased=False)
    return (x - m) / torch.sqrt(v + eps)
def _scatter_add(tgt, idx, src, axis=0):
    return tgt.clone().index_add_(axis, idx, src)
def _segment_sum(src, seg, n):
    out = torch.zeros((n,) + src.shape[1:], dtype=src.dtype)
    return out.index_add_(0, seg, src)
def _pad(x, pw):
    flat = tuple(v for pair in reversed(pw) for v in pair)
    return torch.nn.functional.pad(x, flat)

kernel_name = 'gather_scatter__molecular_angular_gemnet__graph'

def setup_inputs():

    _w = (lambda a: (lambda t: t.to(torch.bfloat16) if t.is_floating_point() else t)(torch.as_tensor(a)))
    N, deg, De, L = 25000, 32, 4, 1
    E = N * deg
    T = E * deg
    NR = 8
    dist = torch.rand(E).to(float)
    angle = (torch.rand(T) * torch.pi).to(float)
    centers = torch.linspace(0.0, 1.0, NR).to(float)
    ang_freq = torch.arange(1, L + 1).to(float)
    return {
        "m": _w((lambda *s: torch.randn(*s, dtype=torch.bfloat16) * 0.05)(E, De)),
        "idx_in": _w((lambda lo, hi, *s: torch.randint(lo, hi, s))(0, E, T).to(torch.int64)),
        "idx_out": _w((lambda lo, hi, *s: torch.randint(lo, hi, s))(0, E, T).to(torch.int64)),
        "dist": _w(dist),
        "angle": _w(angle),
        "centers": _w(centers),
        "ang_freq": _w(ang_freq),
        "w_rbf": _w((lambda *s: torch.randn(*s, dtype=torch.bfloat16) * 0.2)(NR, De)),
        "w_sbf": _w((lambda *s: torch.randn(*s, dtype=torch.bfloat16) * 0.2)(NR * L, De)),
        "w_down": _w((lambda *s: torch.randn(*s, dtype=torch.bfloat16) * 0.2)(De, De)),
        "w_up": _w((lambda *s: torch.randn(*s, dtype=torch.bfloat16) * 0.2)(De, De)),
    }

def reference(m, idx_in, idx_out, dist, angle, centers, ang_freq, w_rbf, w_sbf, w_down, w_up):
    E, De = m.shape[0], m.shape[1]
    NR = centers.shape[0]
    L = ang_freq.shape[0]
    rbf = torch.exp(-10.0 * (dist[:, None] - centers[None, :]) ** 2)
    cbf = torch.cos(ang_freq[None, :] * angle[:, None])
    rbf_t = rbf[idx_out]
    sbf = torch.reshape(rbf_t[:, :, None] * cbf[:, None, :], (-1, NR * L))
    x = (m[idx_in] @ w_down) * (sbf @ w_sbf)
    agg = _segment_sum(x, idx_out, E)
    return m + (agg @ w_up) * (rbf @ w_rbf)
```

```python
NAME="gather_scatter__molecular_angular_gemnet__graph"
E=800000; T=25600000
hdr = open('cdna_kernels/%s.s.ref'%NAME).read().split('\n')
out=[]
for l in hdr:
    if l.startswith('; @launch'): break
    if l.startswith('; Override') or l.startswith('; grid='): continue
    out.append(l)
out.append('; @launch kernel=zero_kernel grid=(3125,1,1) block=(256,1,1) lds=0')
out.append('; @launch kernel=scat_kernel grid=(25000,1,1) block=(256,1,1) lds=0')
out.append('; @launch kernel=fin_kernel grid=(3125,1,1) block=(256,1,1) lds=0')
out.append('.amdgcn_target "amdgcn-amd-amdhsa--gfx950"')
out.append('.text')
def kernel(name, body, vgpr, sgpr):
    out.append('.globl %s'%name)
    out.append('.p2align 8')
    out.append('.type %s,@function'%name)
    out.append('%s:'%name)
    out.extend(body.strip('\n').split('\n'))
    out.append('s_endpgm')
    desc.append('''.amdhsa_kernel %s
  .amdhsa_next_free_vgpr %d
  .amdhsa_next_free_sgpr %d
  .amdhsa_accum_offset %d
  .amdhsa_group_segment_fixed_size 0
  .amdhsa_kernarg_size 112
  .amdhsa_user_sgpr_count 2
  .amdhsa_user_sgpr_kernarg_segment_ptr 1
  .amdhsa_system_sgpr_workgroup_id_x 1
  .amdhsa_float_denorm_mode_32 3
.end_amdhsa_kernel'''%(name,vgpr,sgpr,(vgpr+3)//4*4))
desc=[]
def srd(d, b, n):
    return f'''s_mov_b32 s{d}, s{b}
s_mov_b32 s{d+1}, s{b+1}
s_mov_b32 s{d+2}, {n}
s_mov_b32 s{d+3}, 0x00020000
'''
kernel('zero_kernel', f'''
s_cmp_ge_u32 s2, 3125
s_cbranch_scc1 Lz_done
s_load_dwordx2 s[4:5], s[0:1], 104
s_waitcnt lgkmcnt(0)
{srd(8,4,E*16)}
s_lshl_b32 s3, s2, 8
v_add_u32 v1, s3, v0
v_lshlrev_b32 v1, 4, v1
v_mov_b32 v4, 0
v_mov_b32 v5, 0
v_mov_b32 v6, 0
v_mov_b32 v7, 0
buffer_store_dwordx4 v[4:7], v1, s[8:11], 0 offen
s_waitcnt vmcnt(0)
Lz_done:
''', 16, 24)

body=f'''
s_cmp_ge_u32 s2, 25000
s_cbranch_scc1 Ls_done
s_load_dwordx2 s[4:5], s[0:1], 0
s_load_dwordx2 s[6:7], s[0:1], 8
s_load_dwordx2 s[8:9], s[0:1], 16
s_load_dwordx2 s[10:11], s[0:1], 32
s_load_dwordx2 s[12:13], s[0:1], 48
s_load_dwordx2 s[14:15], s[0:1], 104
s_waitcnt lgkmcnt(0)
s_load_dword s40, s[12:13], 0
{srd(16,4,E*8)}{srd(20,6,T*4)}{srd(24,8,T*4)}{srd(28,10,T*2)}{srd(32,14,E*16)}
s_lshl_b32 s3, s2, 8
v_add_u32 v1, s3, v0
v_lshlrev_b32 v2, 4, v1
v_lshlrev_b32 v3, 3, v1
buffer_load_dwordx4 v[4:7], v2, s[20:23], 0 offen
buffer_load_dwordx4 v[8:11], v2, s[24:27], 0 offen
buffer_load_dwordx2 v[12:13], v3, s[28:31], 0 offen
s_waitcnt lgkmcnt(0)
s_lshl_b32 s40, s40, 16
s_waitcnt vmcnt(2)
v_lshlrev_b32 v4, 3, v4
v_lshlrev_b32 v5, 3, v5
v_lshlrev_b32 v6, 3, v6
v_lshlrev_b32 v7, 3, v7
buffer_load_dwordx2 v[16:17], v4, s[16:19], 0 offen
buffer_load_dwordx2 v[18:19], v5, s[16:19], 0 offen
buffer_load_dwordx2 v[20:21], v6, s[16:19], 0 offen
buffer_load_dwordx2 v[22:23], v7, s[16:19], 0 offen
s_waitcnt vmcnt(4)
v_lshlrev_b32 v24, 16, v12
v_and_b32 v25, 0xffff0000, v12
v_lshlrev_b32 v26, 16, v13
v_and_b32 v27, 0xffff0000, v13
v_mov_b32 v28, 0.15915494
v_mul_f32 v28, s40, v28
v_mul_f32 v24, v28, v24
v_mul_f32 v25, v28, v25
v_mul_f32 v26, v28, v26
v_mul_f32 v27, v28, v27
v_fract_f32 v24, v24
v_fract_f32 v25, v25
v_fract_f32 v26, v26
v_fract_f32 v27, v27
v_cos_f32 v24, v24
v_cos_f32 v25, v25
v_cos_f32 v26, v26
v_cos_f32 v27, v27
v_lshlrev_b32 v8, 4, v8
v_lshlrev_b32 v9, 4, v9
v_lshlrev_b32 v10, 4, v10
v_lshlrev_b32 v11, 4, v11
s_waitcnt vmcnt(0)
'''
for j in range(4):
    g=16+2*j
    body+=f'''
v_lshlrev_b32 v30, 16, v{g}
v_and_b32 v31, 0xffff0000, v{g}
v_lshlrev_b32 v32, 16, v{g+1}
v_and_b32 v33, 0xffff0000, v{g+1}
v_mul_f32 v30, v{24+j}, v30
v_mul_f32 v31, v{24+j}, v31
v_mul_f32 v32, v{24+j}, v32
v_mul_f32 v33, v{24+j}, v33
buffer_atomic_add_f32 v30, v{8+j}, s[32:35], 0 offen
buffer_atomic_add_f32 v31, v{8+j}, s[32:35], 0 offen offset:4
buffer_atomic_add_f32 v32, v{8+j}, s[32:35], 0 offen offset:8
buffer_atomic_add_f32 v33, v{8+j}, s[32:35], 0 offen offset:12
s_waitcnt vmcnt(0)
'''
body = body.replace('v_mov_b32 v28, 0.15915494','v_mov_b32 v28, 0x3e22f983')
body+='Ls_done:\n'
kernel('scat_kernel', body, 40, 48)

body=f'''
s_cmp_ge_u32 s2, 3125
s_cbranch_scc1 Lf_done
s_load_dwordx2 s[4:5], s[0:1], 0
s_load_dwordx2 s[6:7], s[0:1], 24
s_load_dwordx2 s[8:9], s[0:1], 88
s_load_dwordx2 s[10:11], s[0:1], 104
s_load_dwordx2 s[12:13], s[0:1], 40
s_load_dwordx2 s[14:15], s[0:1], 56
s_load_dwordx2 s[32:33], s[0:1], 64
s_load_dwordx2 s[34:35], s[0:1], 72
s_load_dwordx2 s[36:37], s[0:1], 80
s_waitcnt lgkmcnt(0)
s_load_dwordx4 s[40:43], s[12:13], 0
s_load_dwordx16 s[44:59], s[14:15], 0
s_load_dwordx16 s[60:75], s[32:33], 0
s_load_dwordx8 s[76:83], s[34:35], 0
s_load_dwordx8 s[84:91], s[36:37], 0
{srd(16,4,E*8)}{srd(20,6,E*2)}{srd(24,8,E*8)}{srd(28,10,E*16)}
s_lshl_b32 s3, s2, 8
v_add_u32 v1, s3, v0
v_lshlrev_b32 v2, 3, v1
v_lshlrev_b32 v3, 1, v1
v_lshlrev_b32 v4, 4, v1
buffer_load_dwordx2 v[6:7], v2, s[16:19], 0 offen
buffer_load_ushort v8, v3, s[20:23], 0 offen
buffer_load_dwordx4 v[12:15], v4, s[28:31], 0 offen
s_waitcnt vmcnt(0) lgkmcnt(0)
v_lshlrev_b32 v8, 16, v8
'''
def bf(sbase, idx):
    return sbase+idx//2, idx&1
def load_bf_v(v, sbase, idx):
    s,hi = bf(sbase, idx)
    if hi: return f's_and_b32 s92, s{s}, 0xffff0000\nv_mov_b32 v{v}, s92\n'
    else:  return f's_lshl_b32 s92, s{s}, 16\nv_mov_b32 v{v}, s92\n'
for r in range(8):
    body+=load_bf_v(30,40,r)
    body+=f'''v_sub_f32 v30, v8, v30
v_mul_f32 v30, v30, v30
v_mul_f32 v30, 0xc166d4ca, v30
v_exp_f32 v{16+r}, v30
s_nop 0
'''
for k in range(4):
    body+=f'v_mov_b32 v{24+k}, 0\nv_mov_b32 v{32+k}, 0\n'
    for r in range(8):
        body+=load_bf_v(30,60,r*4+k)+f'v_fmac_f32 v{24+k}, v{16+r}, v30\n'
        body+=load_bf_v(30,44,r*4+k)+f'v_fmac_f32 v{32+k}, v{16+r}, v30\n'
for k in range(4):
    body+=f'v_mov_b32 v{36+k}, 0\n'
    for j in range(4):
        body+=load_bf_v(30,76,j*4+k)+f'v_fmac_f32 v{36+k}, v{12+j}, v30\n'
    body+=f'v_mul_f32 v{36+k}, v{36+k}, v{24+k}\n'
for k in range(4):
    body+=f'v_mov_b32 v{40+k}, 0\n'
    for j in range(4):
        body+=load_bf_v(30,84,j*4+k)+f'v_fmac_f32 v{40+k}, v{36+j}, v30\n'
body+='''
v_lshlrev_b32 v44, 16, v6
v_and_b32 v45, 0xffff0000, v6
v_lshlrev_b32 v46, 16, v7
v_and_b32 v47, 0xffff0000, v7
v_fmac_f32 v44, v40, v32
v_fmac_f32 v45, v41, v33
v_fmac_f32 v46, v42, v34
v_fmac_f32 v47, v43, v35
v_cvt_pk_bf16_f32 v48, v44, v45
v_cvt_pk_bf16_f32 v49, v46, v47
buffer_store_dwordx2 v[48:49], v2, s[24:27], 0 offen
s_waitcnt vmcnt(0)
Lf_done:
'''
kernel('fin_kernel', body, 56, 96)
out.append('.section .rodata,"a"')
for d in desc:
    out.append('.p2align 6')
    out.append(d)
open('cdna_kernels/%s.s'%NAME,'w').write('\n'.join(out)+'\n')
```

```python
import re
TRANS=('v_exp_f32','v_log_f32','v_rcp_f32','v_rsq_f32','v_sqrt_f32','v_sin_f32','v_cos_f32','v_rcp_iflag_f32')
def regs_of(tok):
    tok=tok.strip()
    tok=re.sub(r'^-|^\|','',tok); tok=tok.rstrip('|')
    m=re.fullmatch(r'abs\((.*)\)',tok)
    if m: tok=m.group(1)
    m=re.fullmatch(r'([vs])(\d+)',tok)
    if m: return {(m.group(1),int(m.group(2)))}
    m=re.fullmatch(r'([vs])\[(\d+):(\d+)\]',tok)
    if m: return {(m.group(1),i) for i in range(int(m.group(2)),int(m.group(3))+1)}
    if tok in('vcc','vcc_lo','vcc_hi'): return {('vcc',0)}
    if tok in('exec','exec_lo','exec_hi'): return {('exec',0)}
    return set()
def parse(line):
    l=line.split(';')[0].strip()
    if not l or l.endswith(':') or l.startswith('.'): return None
    p=l.split(None,1)
    op=p[0]
    ops=[]
    if len(p)>1:
        rest=p[1]
        cur='';depth=0
        for ch in rest:
            if ch=='[':depth+=1
            if ch==']':depth-=1
            if ch==',' and depth==0: ops.append(cur.strip());cur=''
            else: cur+=ch
        ops.append(cur.strip())
        last=ops[-1].split()
        mods=last[1:]; ops[-1]=last[0] if last else ''
    else: mods=[]
    return op,ops,mods
def classify(op,ops,mods):
    isv=op.startswith('v_')
    d=set(); s=set()
    if isv:
        if op.startswith('v_cmpx'):
            d=regs_of(ops[0])|{('exec',0)};
            for o in ops[1:]: s|=regs_of(o)
        elif op.startswith('v_cmp'):
            d=regs_of(ops[0])
            for o in ops[1:]: s|=regs_of(o)
        elif op.startswith(('v_add_co','v_sub_co','v_subrev_co','v_addc_co','v_subb_co')):
            d=regs_of(ops[0])|regs_of(ops[1])
            for o in ops[2:]: s|=regs_of(o)
        else:
            d=regs_of(ops[0])
            for o in ops[1:]: s|=regs_of(o)
            if op.startswith(('v_fmac','v_mac','v_pk_fmac','v_dot2c')) or '_dpp' in op or op.startswith('v_writelane'): s|=d
            if op.startswith('v_cndmask') and len(ops)==3: s|={('vcc',0)}
        return dict(kind='valu',dst=d,src=s)
    if op.startswith(('buffer_','global_','flat_')):
        store='store' in op or ('atomic' in op)
        for i,o in enumerate(ops):
            if i==0 and not store: d|=regs_of(o)
            else: s|=regs_of(o)
        return dict(kind='vmem',dst=d,src=s,store=store,data=regs_of(ops[0]) if op.startswith('buffer_') and store else set())
    if op.startswith('ds_'):
        hasdst=('read' in op) or ('rtn' in op) or ('permute' in op) or ('swizzle' in op)
        for i,o in enumerate(ops):
            if i==0 and hasdst: d|=regs_of(o)
            else: s|=regs_of(o)
        return dict(kind='ds',dst=d,src=s)
    if op.startswith('s_'):
        if op.startswith(('s_cmp','s_cbranch','s_branch','s_waitcnt','s_barrier','s_nop','s_endpgm','s_bitcmp','s_sleep','s_setprio')):
            for o in ops: s|=regs_of(o)
        else:
            d=regs_of(ops[0]) if ops else set()
            for o in ops[1:]: s|=regs_of(o)
        return dict(kind='salu',dst=d,src=s)
    return dict(kind='other',dst=d,src=s)
def fix_hazards(lines):
    out=[]
    hist=[]
    def dist_since(pred):
        n=0
        for info,op,w in reversed(hist):
            if pred(info,op): return n
            n+=w
            if n>=8: return None
        return None
    nins=0
    for line in lines:
        p=parse(line)
        if p is None:
            out.append(line)
            continue
        op,ops,mods=p
        info=classify(op,ops,mods)
        need=0
        def req(pred,k):
            nonlocal need
            d=dist_since(pred)
            if d is not None and d<k: need=max(need,k-d)
        src=info['src']
        vs={r for r in src if r[0]=='v'}
        ss={r for r in src if r[0] in('s','vcc')}
        if info['kind']=='valu':
            if '_dpp' in op:
                s0=regs_of(ops[1])|regs_of(ops[0])
                req(lambda i,o: i['kind']=='valu' and i['dst']&s0, 2)
                req(lambda i,o: i['kind']=='valu' and ('exec',0) in i['dst'], 5)
            if op.startswith(('v_readlane','v_readfirstlane')):
                s0=regs_of(ops[1])
                req(lambda i,o: i['kind']=='valu' and i['dst']&s0, 1)
                if len(ops)>2:
                    sel=regs_of(ops[2])
                    req(lambda i,o: i['kind']=='valu' and i['dst']&sel, 4)
            if op.startswith('v_permlane'):
                req(lambda i,o: i['kind']=='valu' and i['dst']&(src|info['dst']), 2)
            if ss: req(lambda i,o: i['kind']=='valu' and i['dst']&ss, 2)
            if op.split('_e')[0] not in TRANS and not any(op.startswith(t) for t in TRANS):
                req(lambda i,o: any(o.startswith(t) for t in TRANS) and i['dst']&src, 1)
            req(lambda i,o: i['kind']=='vmem' and i.get('store') and ('x4' in o or 'x3' in o) and i['data']&info['dst'], 2)
        elif info['kind']=='vmem':
            if ss: req(lambda i,o: i['kind']=='valu' and i['dst']&ss, 5)
            req(lambda i,o: any(o.startswith(t) for t in TRANS) and i['dst']&src, 1)
            req(lambda i,o: i['kind']=='vmem' and i.get('store') and ('x4' in o or 'x3' in o) and i['data']&info['dst'], 1)
        elif info['kind']=='ds':
            req(lambda i,o: any(o.startswith(t) for t in TRANS) and i['dst']&src, 1)
            req(lambda i,o: i['kind']=='vmem' and i.get('store') and ('x4' in o or 'x3' in o) and i['data']&info['dst'], 1)
        elif info['kind']=='salu':
            if ss and not op.startswith(('s_nop','s_waitcnt')): req(lambda i,o: i['kind']=='valu' and i['dst']&ss, 2)
        if need>0:
            out.append(f's_nop {need-1}')
            hist.append((dict(kind='salu',dst=set(),src=set()),'s_nop',need)); nins+=1
        out.append(line)
        w=1
        if op=='s_nop': w=int(ops[0],0)+1
        hist.append((info,op,w))
        if len(hist)>16: hist.pop(0)
    return out,nins

class Asm:
    def __init__(self):
        self.lines=[]
        self.desc=[]
        self.meta=[]
        self.uid=0
    def __call__(self, s):
        for l in s.strip('\n').split('\n'):
            l=l.strip()
            if l: self.lines.append(l)
    def label(self, base='L'):
        self.uid+=1
        return f'{base}_{self.uid}'
    def begin(self, name):
        self(f'.globl {name}\n.p2align 8\n.type {name},@function\n{name}:')
        self.cur=name
    def end(self, vgpr, sgpr, accum=None, denorm=3, kernarg=112, meta_maxwg=1024):
        self('s_endpgm')
        if accum is None: accum=(vgpr+3)//4*4
        self.desc.append(f'''.amdhsa_kernel {self.cur}
  .amdhsa_next_free_vgpr {vgpr}
  .amdhsa_next_free_sgpr {sgpr}
  .amdhsa_accum_offset {accum}
  .amdhsa_group_segment_fixed_size 0
  .amdhsa_kernarg_size {kernarg}
  .amdhsa_user_sgpr_count 2
  .amdhsa_user_sgpr_kernarg_segment_ptr 1
  .amdhsa_system_sgpr_workgroup_id_x 1
  .amdhsa_float_denorm_mode_32 {denorm}
.end_amdhsa_kernel''')
        self.meta.append((self.cur, kernarg, sgpr, vgpr, meta_maxwg))
    def text(self, header_lines=(), with_meta=False, hazards=True):
        out=list(header_lines)
        out.append('.amdgcn_target "amdgcn-amd-amdhsa--gfx950"')
        out.append('.text')
        lines=self.lines
        if hazards:
            lines,n=fix_hazards(lines)
            self.nops=n
        out+=lines
        out.append('.section .rodata,"a"')
        for d in self.desc:
            out.append('.p2align 6'); out.append(d)
        if with_meta:
            out.append('.amdgpu_metadata\n---\namdhsa.version: [1, 2]\namdhsa.kernels:')
            for (n,ka,sg,vg,mw) in self.meta:
                out.append(f'''  - .name: {n}
    .symbol: {n}.kd
    .kernarg_segment_size: {ka}
    .kernarg_segment_align: 8
    .group_segment_fixed_size: 0
    .private_segment_fixed_size: 0
    .wavefront_size: 64
    .sgpr_count: {sg}
    .vgpr_count: {vg}
    .max_flat_workgroup_size: {mw}
    .args:
      - {{.name: kernargs, .size: {ka}, .offset: 0, .value_kind: by_value}}''')
            out.append('...\n.end_amdgpu_metadata')
        return '\n'.join(out)+'\n'

def srd(d, b, n):
    return f'''s_mov_b32 s{d}, s{b}
s_and_b32 s{d+1}, s{b+1}, 0xffff
s_mov_b32 s{d+2}, {n}
s_mov_b32 s{d+3}, 0x00020000'''
def srd_off(d, b, off, n):
    return f'''s_add_u32 s{d}, s{b}, {off}
s_addc_u32 s{d+1}, s{b+1}, 0
s_and_b32 s{d+1}, s{d+1}, 0xffff
s_mov_b32 s{d+2}, {n}
s_mov_b32 s{d+3}, 0x00020000'''
```

```python
from asmlib import *
import main as M
E=M.E; T=M.T; OOB=M.OOB; BIG=M.BIG

def scale_setup(a, S_MX, vL16, t, sdst):
    a(f'buffer_load_dwordx4 v[{t}:{t+3}], v{vL16}, s[{S_MX}:{S_MX+3}], 0 offen')
    a('s_waitcnt vmcnt(0)')
    a(f'v_max_u32 v{t}, v{t}, v{t+1}')
    a(f'v_max_u32 v{t+2}, v{t+2}, v{t+3}')
    a(f'v_max_u32 v{t}, v{t}, v{t+2}')
    M.dpp_max(a,t)
    a(f'v_readlane_b32 s{sdst+1}, v{t}, 63')
    a(f's_lshr_b32 s{sdst+1}, s{sdst+1}, 7')
    a(f's_sub_u32 s{sdst}, 268, s{sdst+1}')
    a(f's_min_u32 s{sdst}, s{sdst}, 254')
    a(f's_max_u32 s{sdst}, s{sdst}, 1')

def batch_setup(a, vmeta, vI, vD, vt, stride_units, vrow, sU):
    a(f'v_lshrrev_b32 v{vI}, 16, v{vmeta}')
    a(f'v_mov_b32 v{vt}, v{vI}')
    M.dpp_scan(a,vI)
    a(f'v_sub_u32 v{vt}, v{vI}, v{vt}')
    a(f'v_and_b32 v{vmeta}, 0xffff, v{vmeta}')
    a(f'v_sub_u32 v{vmeta}, v{vmeta}, v{vt}')
    a(f'v_mov_b32 v{vt}, {stride_units}')
    a(f'v_mad_u32_u24 v{vD}, v{vrow}, v{vt}, v{vmeta}')
    a(f'v_readlane_b32 s{sU}, v{vI}, 63')

def search(a, wins, vI, vD, vLane, sU_list, sT_list, temps):
    n=len(wins)
    for w in wins:
        l4,t,p=temps[w]
        a(f'v_add_u32 v{t}, s{sT_list[w]}, v{vLane}')
        a(f'v_mov_b32 v{l4}, 0')
    for step in (32,16,8,4,2,1):
        for w in wins:
            l4,t,p=temps[w]
            a(f'v_add_u32 v{p}, {(step-1)*4}, v{l4}')
            a(f'ds_bpermute_b32 v{p}, v{p}, v{vI[w]}')
        for i,w in enumerate(wins):
            l4,t,p=temps[w]
            a(f's_waitcnt lgkmcnt({n-1-i})')
            a(f'v_cmp_le_u32 vcc, v{p}, v{t}')
            a(f'v_cndmask_b32 v{p}, 0, {step*4} , vcc'.replace(' ,',',') if step*4<=64 else '')
            if step*4>64:
                a(f'v_cndmask_b32 v{p}, 0, v{temps["c128"]}, vcc')
            a(f'v_add_u32 v{l4}, v{l4}, v{p}')
    for w in wins:
        l4,t,p=temps[w]
        a(f'ds_bpermute_b32 v{l4}, v{l4}, v{vD[w]}')
    for i,w in enumerate(wins):
        l4,t,p=temps[w]
        a(f's_waitcnt lgkmcnt({n-1-i})')
        a(f'v_add_u32 v{l4}, v{l4}, v{t}')


def batch_setup2(a, vmeta, vS, vD, vt, stride_units, vrow, sU, vLane, NF, sent=0x08000000):
    a(f'v_lshrrev_b32 v{vS}, 16, v{vmeta}')
    a(f'v_mov_b32 v{vt}, v{vS}')
    M.dpp_scan(a,vS)
    a(f'v_readlane_b32 s{sU}, v{vS}, 63')
    a(f'v_sub_u32 v{vS}, v{vS}, v{vt}')
    a(f'v_and_b32 v{vmeta}, 0xffff, v{vmeta}')
    a(f'v_sub_u32 v{vmeta}, v{vmeta}, v{vS}')
    a(f'v_mov_b32 v{vt}, {stride_units}')
    a(f'v_mad_u32_u24 v{vD}, v{vrow}, v{vt}, v{vmeta}')
    a(f's_sub_u32 s3, {sent}, s{sU}')
    a(f'v_mov_b32 v{vt}, s3')
    a(f'v_cmp_eq_u32 vcc, {NF}, v{vLane}')
    a(f'v_cndmask_b32 v{vD}, v{vD}, v{vt}, vcc')
    a(f'v_mov_b32 v{vt}, -1')
    a(f'v_cmp_lt_u32 vcc, {NF}, v{vLane}')
    a(f'v_cndmask_b32 v{vS}, v{vS}, v{vt}, vcc')

def gen_window(a, vS, vD, vLane, vG, sL, sS, sDc, sT0, sE, sX, tag):
    L=a.label('gw'+tag); Le=a.label('gwe'+tag)
    a(f'v_mov_b32 v{vG}, s{sDc}')
    a(f's_add_u32 s{sE}, s{sT0}, 64')
    a(f's_cmp_lt_u32 s{sS}, s{sE}')
    a(f's_cbranch_scc0 {Le}')
    a(f'{L}:')
    a(f'v_readlane_b32 s{sDc}, v{vD}, s{sL}')
    a(f's_add_u32 s{sL}, s{sL}, 1')
    a(f's_sub_u32 s{sX}, s{sS}, s{sT0}')
    a(f's_max_i32 s{sX}, s{sX}, 0')
    a(f'v_readlane_b32 s{sS}, v{vS}, s{sL}')
    a(f's_lshl_b64 exec, -1, s{sX}')
    a(f'v_mov_b32 v{vG}, s{sDc}')
    a(f's_cmp_lt_u32 s{sS}, s{sE}')
    a(f's_cbranch_scc1 {L}')
    a(f's_mov_b64 exec, -1')
    a(f'{Le}:')
    a(f'v_add3_u32 v{vG}, v{vG}, s{sT0}, v{vLane}')

def next_window(a, sT0, sUcur, sSW, sUB, vI, vD, vIB, vDB, sTout, sUout):
    pass

def mk_stamp(a,opt,key,vP,sreg=90):
    st={'n':0}
    def stamp(tag=''):
        if opt.get('prof')!=key: return
        if tag in('rs','re'):
            a(f's_memrealtime s[{sreg}:{sreg+1}]')
            a('s_waitcnt lgkmcnt(0)')
            a(f'v_writelane_b32 v{vP[0]}, s{sreg}, {62 if tag=="rs" else 63}')
            return
        i=st['n']; st['n']+=1
        a(f's_memtime s[{sreg}:{sreg+1}]')
        a('s_waitcnt lgkmcnt(0)')
        a(f'v_writelane_b32 v{vP[i//64]}, s{sreg}, {i%64}')
    def dump(srd_tmp, argoff=96):
        if opt.get('prof')!=key: return
        pass
    return stamp,st
def k2(a,opt):
    a.begin('gath_kernel')
    HIST=[0,1024]; OFFS=2048; TAB=3072; STG=TAB+3136*8
    assert STG==28160 and STG+M.CAP2U*16==161280
    S_PK,S_PC,S_M1,S_M,S_MX,S_Q,S_M2,S_FL=8,12,16,20,24,28,32,36
    ld=opt.get('k2_ld',''); st=opt.get('k2_st',' nt')
    V_TID=0; V_O16=1; V_L16=2; V_LANE=3; V_Z=4
    V_IA,V_DA,V_IB,V_DB=8,9,10,11
    V_BIG=12; V_OOB=13; V_ONE=14; V_C128=15
    def KEY(s,j): return 16+s*24+j
    def CC(s,j): return 16+s*24+16+j
    XL=64
    def LO(j): return XL+2*j
    TMP=96
    a(f'''
s_cmp_ge_u32 s2, 256
s_cbranch_scc1 k2_end
''')
    stamp,stt=mk_stamp(a,opt,'k2',[124,125])
    stamp('rs')
    stamp()
    tA=TMP; tB=TMP+1; rA=TMP+2; rB=TMP+3; mA=TMP+4; mB=TMP+5
    TS=TMP+8
    a(f'''
s_load_dwordx2 s[44:45], s[0:1], 104
s_load_dwordx2 s[46:47], s[0:1], 0
v_lshlrev_b32 v{V_O16}, 4, v{V_TID}
v_and_b32 v{V_LANE}, 63, v{V_TID}
v_lshlrev_b32 v{V_L16}, 4, v{V_LANE}
v_mov_b32 v{V_Z}, 0
v_mov_b32 v{V_Z+1}, 0
v_mov_b32 v{V_Z+2}, 0
v_mov_b32 v{V_Z+3}, 0
v_lshrrev_b32 v{TMP}, 6, v{V_TID}
v_readfirstlane_b32 s43, v{TMP}
v_mov_b32 v{V_BIG}, {BIG}
v_mov_b32 v{V_OOB}, {OOB}
v_mov_b32 v{V_ONE}, 1
s_and_b32 s42, s2, 7
s_lshl_b32 s42, s42, 5
s_lshr_b32 s3, s2, 3
s_add_u32 s42, s42, s3
''')
    a(f's_mul_i32 s50, s43, 80')
    a(f'v_add_u32 v{rA}, s50, v{V_LANE}')
    a(f'v_add_u32 v{rB}, 40, v{rA}')
    a(f'v_lshlrev_b32 v{tA}, 10, v{rA}')
    a(f'v_lshlrev_b32 v{tB}, 10, v{rB}')
    a(f'v_cmp_gt_u32 vcc, 40, v{V_LANE}')
    a(f'v_cndmask_b32 v{tA}, v{V_OOB}, v{tA}, vcc')
    a(f'v_cndmask_b32 v{tB}, v{V_OOB}, v{tB}, vcc')
    for k in range(4):
        t=TMP+16+k
        a(f'v_add_u32 v{t}, {1024*k}, v{V_TID}')
        a(f'v_lshrrev_b32 v{TMP+20}, 4, v{t}')
        a(f'v_lshlrev_b32 v{TMP+20}, 15, v{TMP+20}')
        a(f'v_and_b32 v{t}, 15, v{t}')
        a(f'v_lshl_or_b32 v{t}, v{t}, 3, v{TMP+20}')
        if k==3:
            a(f'v_cmp_gt_u32 vcc, 64, v{V_TID}')
            a(f'v_cndmask_b32 v{t}, v{V_OOB}, v{t}, vcc')
    a(f'v_cmp_gt_u32 vcc, 128, v{V_TID}')
    a(f's_and_saveexec_b64 s[62:63], vcc')
    a(f'ds_write_b128 v{V_O16}, v[{V_Z}:{V_Z+3}]')
    a(f's_mov_b64 exec, s[62:63]')
    a('s_lshl_b32 s51, s42, 2')
    a('s_lshl_b32 s54, s42, 7')
    a('s_waitcnt lgkmcnt(0)')
    a(srd_off(S_M1,44,M.M1_OFF,M.NCH1*1024))
    a(f'buffer_load_dword v{mA}, v{tA}, s[{S_M1}:{S_M1+3}], s51 offen')
    a(f'buffer_load_dword v{mB}, v{tB}, s[{S_M1}:{S_M1+3}], s51 offen')
    a(srd_off(S_MX,44,M.MX_OFF,1024))
    a(f'buffer_load_dwordx4 v[{TMP+24}:{TMP+27}], v{V_L16}, s[{S_MX}:{S_MX+3}], 0 offen')
    a(srd(S_M,46,E*8))
    for k in range(4):
        a(f'buffer_load_dwordx2 v[{TS+2*k}:{TS+2*k+1}], v{TMP+16+k}, s[{S_M}:{S_M+3}], s54 offen')
    a(srd_off(S_PK,44,M.PK_OFF,M.NCH1*M.CAP1U*24))
    a(srd_off(S_M2,44,M.M2_OFF,M.NSLOT*1024))
    a(srd_off(S_FL,44,M.FL_OFF,4))
    a(f'''s_add_u32 s52, s44, {M.Q_OFF}
s_addc_u32 s53, s45, 0
s_mov_b32 s{S_Q}, s52
s_and_b32 s{S_Q+1}, s53, 0xffff
s_mov_b32 s{S_Q+2}, 0
s_mov_b32 s{S_Q+3}, 0x00020000''')
    a('s_waitcnt vmcnt(5)')
    batch_setup2(a,mA,V_IA,V_DA,tA,M.CAP1U,rA,46,V_LANE,40,7000000)
    batch_setup2(a,mB,V_IB,V_DB,tB,M.CAP1U,rB,47,V_LANE,40,7000000)
    a('''s_add_u32 s48, s46, 63
s_lshr_b32 s48, s48, 6
s_add_u32 s49, s47, 63
s_lshr_b32 s49, s49, 6
s_add_u32 s50, s48, s49''')
    Lok=a.label('k2ok')
    a(f's_cmp_le_u32 s50, {4*M.RND}')
    a(f's_cbranch_scc1 {Lok}')
    a(f'buffer_store_dword v{V_ONE}, v{V_Z}, s[{S_FL}:{S_FL+3}], 0 offen sc0 sc1')
    a('s_waitcnt vmcnt(0)')
    a(f'{Lok}:')
    a('''s_mov_b32 s64, 0
s_mov_b32 s65, 0
s_mov_b32 s66, 0
s_mov_b32 s68, 0''')
    a(f'v_readlane_b32 s67, v{V_IA}, 0')
    def gen(rnd,s):
        for w in range(4):
            Lns=a.label('k2ns')
            a('s_cmp_lt_u32 s64, s46')
            a(f's_cbranch_scc1 {Lns}')
            a('s_cmp_lg_u32 s65, 0')
            a(f's_cbranch_scc1 {Lns}')
            a(f'v_mov_b32 v{V_IA}, v{V_IB}')
            a(f'v_mov_b32 v{V_DA}, v{V_DB}')
            a('s_mov_b32 s46, s47')
            a('s_mov_b32 s64, 0')
            a('s_mov_b32 s65, 1')
            a('s_mov_b32 s66, 0')
            a(f'v_readlane_b32 s67, v{V_IA}, 0')
            a(f'{Lns}:')
            g=TMP+2*w; p=g+1
            gen_window(a,V_IA,V_DA,V_LANE,g,66,67,68,64,69,70,'k2')
            a('s_add_u32 s64, s64, 64')
            a(f'v_mul_u32_u24 v{g}, 24, v{g}')
            a(f'buffer_load_dwordx4 v[{KEY(s,4*w)}:{KEY(s,4*w)+3}], v{g}, s[{S_PK}:{S_PK+3}], 0 offen{ld}')
            a(f'buffer_load_dwordx2 v[{CC(s,2*w)}:{CC(s,2*w)+1}], v{g}, s[{S_PK}:{S_PK+3}], 0 offen offset:16{opt.get("k2_ld2",ld)}')
    gen(0,0)
    a('s_waitcnt vmcnt(8)')
    t=TMP+24
    a(f'v_max_u32 v{t}, v{t}, v{t+1}')
    a(f'v_max_u32 v{t+2}, v{t+2}, v{t+3}')
    a(f'v_max_u32 v{t}, v{t}, v{t+2}')
    M.dpp_max(a,t)
    a(f'v_readlane_b32 s41, v{t}, 63')
    a('s_lshr_b32 s41, s41, 7')
    a('s_sub_u32 s40, 268, s41')
    a('s_min_u32 s40, s40, 254')
    a('s_max_u32 s40, s40, 1')
    a('s_lshl_b32 s41, s40, 23')
    for k in range(4):
        x=TMP+24
        for h in range(2):
            src=TS+2*k+h
            a(f'v_lshlrev_b32 v{x}, 16, v{src}')
            a(f'v_and_b32 v{x+1}, 0xffff0000, v{src}')
            a(f'v_mul_f32 v{x}, s41, v{x}')
            a(f'v_mul_f32 v{x+1}, s41, v{x+1}')
            a(f'v_cvt_pk_f16_f32 v{src}, v{x}, v{x+1}')
        a(f'v_add_u32 v{x}, {1024*k}, v{V_TID}')
        a(f'v_lshlrev_b32 v{x}, 3, v{x}')
        if k==3:
            a(f'v_cmp_gt_u32 vcc, 64, v{V_TID}')
            a(f's_and_saveexec_b64 s[62:63], vcc')
        a(f'ds_write_b64 v{x}, v[{TS+2*k}:{TS+2*k+1}] offset:{TAB}')
        if k==3: a(f's_mov_b64 exec, s[62:63]')
    a('s_mov_b32 s72, 0x00070007')
    a(f's_mov_b32 s73, {BIG}')
    a('s_waitcnt lgkmcnt(0)')
    a('s_barrier')
    for r in range(M.RND):
        s=r&1; p=r&1; H=HIST[p]; HO=HIST[1-p]
        a(f'; ---- round {r} ----')
        stamp()
        LP=int(opt.get('k2_lp',4))
        if r==0 and int(opt.get('k2_l0',0)): LP=0
        if r+1<M.RND and LP==0:
            gen(r+1,1-s)
            stamp()
            a(f's_waitcnt vmcnt({8 if r==0 else 17})')
        else:
            stamp()
            a(f's_waitcnt vmcnt({0 if r==0 else 9})')
        stamp()
        def issue(g):
            hb=TMP+(g&1)*8
            for q in range(4):
                j=4*g+q; K=KEY(s,j); t=TMP+16
                a(f'v_lshlrev_b32 v{t}, 3, v{K}')
                a(f'v_and_b32 v{t}, 0x7ff8, v{t}')
                a(f'ds_read_b64 v[{LO(j)}:{LO(j)+1}], v{t} offset:{TAB}')
            for q in range(4):
                j=4*g+q; K=KEY(s,j); C=CC(s,j//2); h=hb+q
                if j&1: a(f'v_cmp_lt_u32 vcc, 0xffff, v{C}')
                else:   a(f'v_cmp_ne_u16 vcc, 0, v{C}')
                a(f'v_lshrrev_b32 v{h}, 14, v{K}')
                a(f'v_and_b32 v{h}, 0x3fc, v{h}')
                a(f'v_cndmask_b32 v{h}, v{V_BIG}, v{h}, vcc')
                a(f'ds_add_rtn_u32 v{hb+4+q}, v{h}, v{V_ONE} offset:{H}')
        def finish(g,wait_tab,wait_rtn):
            hb=TMP+(g&1)*8
            a(f's_waitcnt lgkmcnt({wait_tab})')
            for q in range(4):
                j=4*g+q; K=KEY(s,j); C=CC(s,j//2); t0=TMP+17; t1=TMP+18; t2=TMP+19
                sel='op_sel:[0,1] op_sel_hi:[1,1]' if j&1 else 'op_sel:[0,0] op_sel_hi:[1,0]'
                a(f'v_pk_mul_f16 v{LO(j)}, v{LO(j)}, v{C} {sel}')
                a(f'v_pk_mul_f16 v{LO(j)+1}, v{LO(j)+1}, v{C} {sel}')
                a(f'v_lshrrev_b32 v{t0}, 20, v{K}')
                a(f'v_lshrrev_b32 v{t1}, 12, v{K}')
                a(f'v_bfi_b32 v{t0}, 15, v{t1}, v{t0}')
                a(f'v_add_u32 v{LO(j)}, 0x00040004, v{LO(j)}')
                a(f'v_add_u32 v{LO(j)+1}, 0x00040004, v{LO(j)+1}')
                a(f'v_lshl_or_b32 v{t1}, v{t0}, 13, v{t0}')
                a(f'v_lshrrev_b32 v{t2}, 6, v{t0}')
                a(f'v_bfi_b32 v{LO(j)}, s72, v{t1}, v{LO(j)}')
                a(f'v_lshl_or_b32 v{t2}, v{t2}, 13, v{t2}')
                a(f'v_bfi_b32 v{LO(j)+1}, s72, v{t2}, v{LO(j)+1}')
            a(f's_waitcnt lgkmcnt({wait_rtn})')
            for q in range(4):
                j=4*g+q
                a(f'v_lshl_or_b32 v{KEY(s,j)}, v{hb+4+q}, 18, v{hb+q}')
        issue(0)
        for g in range(1,4):
            issue(g)
            finish(g-1, 12, 8)
        finish(3, 4, 0)
        if r+1<M.RND and LP==1: gen(r+1,1-s)
        stamp()
        a('s_barrier')
        stamp()
        if r+1<M.RND and LP==2: gen(r+1,1-s)
        c=TMP; n=TMP+4; e=TMP+8; tot=TMP+12; inc=TMP+13
        a(f'ds_read_b128 v[{c}:{c+3}], v{V_L16} offset:{H}')
        a('s_waitcnt lgkmcnt(0)')
        for q in range(4):
            a(f'v_add_u32 v{n+q}, 1, v{c+q}')
            a(f'v_lshrrev_b32 v{n+q}, 1, v{n+q}')
        a(f'v_add_u32 v{e+2}, v{n}, v{n+1}')
        a(f'v_add_u32 v{e+3}, v{e+2}, v{n+2}')
        a(f'v_add_u32 v{tot}, v{e+3}, v{n+3}')
        a(f'v_mov_b32 v{inc}, v{tot}')
        M.dpp_scan(a,inc)
        a(f'v_sub_u32 v{e}, v{inc}, v{tot}')
        a(f'v_add_u32 v{e+1}, v{e}, v{n}')
        a(f'v_add_u32 v{e+2}, v{e}, v{e+2}')
        a(f'v_add_u32 v{e+3}, v{e}, v{e+3}')
        a(f'v_readlane_b32 s61, v{inc}, 63')
        for q in range(4): a(f'v_lshl_or_b32 v{n+q}, v{n+q}, 16, v{e+q}')
        for q in range(4): a(f'v_lshlrev_b32 v{e+q}, 4, v{e+q}')
        a(f'ds_write_b128 v{V_L16}, v[{e}:{e+3}] offset:{OFFS}')
        a(f'ds_write_b128 v{V_L16}, v[{V_Z}:{V_Z+3}] offset:{HO}')
        L=a.label('k2w0')
        a('s_cmp_lg_u32 s43, 0')
        a(f's_cbranch_scc1 {L}')
        a(f's_mul_i32 s50, s42, {M.RND}')
        a(f's_add_u32 s50, s50, {r}')
        a('s_lshl_b32 s50, s50, 10')
        a(f'buffer_store_dwordx4 v[{n}:{n+3}], v{V_L16}, s[{S_M2}:{S_M2+3}], s50 offen')
        for q in range(4):
            t=TMP+14; u=TMP+15
            a(f'v_and_b32 v{u}, 1, v{c+q}')
            a(f'v_cmp_eq_u32 vcc, 1, v{u}')
            a(f'v_lshl_add_u32 v{t}, v{c+q}, 3, v{e+q}')
            a(f'v_cndmask_b32 v{t}, v{V_BIG}, v{t}, vcc')
            a(f'ds_write_b64 v{t}, v[{V_Z}:{V_Z+1}] offset:{STG}')
        a(f'{L}:')
        a(f's_mul_i32 s50, s42, {M.RND}')
        a(f's_add_u32 s50, s50, {r}')
        a(f's_mul_i32 s51, s50, {M.CAP2U*16}')
        a(f's_add_u32 s{S_Q}, s52, s51')
        a(f's_addc_u32 s{S_Q+1}, s53, 0')
        a(f's_and_b32 s{S_Q+1}, s{S_Q+1}, 0xffff')
        a(f's_lshl_b32 s{S_Q+2}, s61, 4')
        a(f's_add_u32 s{S_Q+2}, s{S_Q+2}, 127')
        a(f's_and_b32 s{S_Q+2}, s{S_Q+2}, 0xffffff80')
        a('s_waitcnt lgkmcnt(0)')
        if r+1<M.RND and LP==4:
            gen(r+1,1-s)
        stamp()
        for g in range(2):
            js=list(range(8*g,8*g+8))
            for i,j in enumerate(js):
                t=TMP+i
                a(f'v_and_b32 v{t}, 0x3ffff, v{KEY(s,j)}')
                a(f'ds_read_b32 v{t}, v{t} offset:{OFFS}')
            for i,j in enumerate(js):
                t=TMP+i; u=TMP+8
                a(f's_waitcnt lgkmcnt({min(15,7-i+i)})' if False else '')
                if i==0: a('s_waitcnt lgkmcnt(0)')
                a(f'v_lshrrev_b32 v{u}, 18, v{KEY(s,j)}')
                a(f'v_lshl_add_u32 v{t}, v{u}, 3, v{t}')
                a(f'v_and_or_b32 v{t}, v{KEY(s,j)}, s73, v{t}')
                a(f'ds_write_b64 v{t}, v[{LO(j)}:{LO(j)+1}] offset:{STG}')
        a('s_waitcnt lgkmcnt(0)')
        if r+1<M.RND and LP==5: gen(r+1,1-s)
        stamp()
        a('s_barrier')
        stamp()
        if r+1<M.RND and LP==3: gen(r+1,1-s)
        D0=XL
        def dreg(q): return D0+4*q if q<8 else TMP+16
        for q in range(9):
            t=TMP+q
            a(f'v_add_u32 v{t}, {q*16384}, v{V_O16}')
            a(f'ds_read_b128 v[{dreg(q)}:{dreg(q)+3}], v{t} offset:{STG}')
        for q in range(9):
            a(f's_waitcnt lgkmcnt({8-q})')
            stp=st if r<int(opt.get('k2_mr',99)) else ''
            a(f'buffer_store_dwordx4 v[{dreg(q)}:{dreg(q)+3}], v{TMP+q}, s[{S_Q}:{S_Q+3}], 0 offen{stp}')
    stamp()
    a('s_waitcnt vmcnt(0) lgkmcnt(0)')
    stamp()
    if opt.get('prof')=='k2':
        stamp('re')
        a(srd_off(8,44,M.FL_OFF+4096,4096*512))
        a('s_lshl_b32 s50, s2, 4')
        a('s_add_u32 s50, s50, s43')
        a('s_lshl_b32 s50, s50, 9')
        a(f'v_lshlrev_b32 v{TMP}, 2, v{V_LANE}')
        a(f'buffer_store_dword v124, v{TMP}, s[8:11], s50 offen')
        a(f'buffer_store_dword v125, v{TMP}, s[8:11], s50 offen offset:256')
        a('s_waitcnt vmcnt(0)')
    if opt.get('fuse23'):
        a('s_barrier')
        import k3 as K3
        K3.k3(a,opt,fused=True)
        return
    a('k2_end:')
    a.end(128, 100)

def bf_to_v(a, v, sbase, idx):
    s=sbase+idx//2
    if idx&1: a(f's_and_b32 s100, s{s}, 0xffff0000')
    else:     a(f's_lshl_b32 s100, s{s}, 16')
    a(f'v_mov_b32 v{v}, s100')

def k3(a,opt):
    a.begin('acc_kernel')
    CS=3136*8
    S_Q,S_M2,S_MX,S_FL,S_M,S_DI,S_O=8,12,16,20,24,28,32
    S_IN,S_OU,S_AN=36,40,44
    ld=opt.get('k3_ld','')
    V_TID=0; V_O16=1; V_L16=2; V_LANE=3; V_Z=4
    V_IA,V_DA,V_IB,V_DB=8,9,10,11
    V_OOB=13; V_BIG=15; V_K16=14
    NWX=int(opt.get('k3_nw',4))
    def REC(s,w): return 16+s*4*NWX+4*w
    TMP=16+8*NWX
    a(f'''
s_cmp_ge_u32 s2, 256
s_cbranch_scc1 k3_end
''')
    PV=TMP+54
    stamp,stt=mk_stamp(a,opt,'k3',[PV,PV+1],sreg=90)
    if opt.get('prof')=='k3':
        a('s_memrealtime s[92:93]')
    stamp()
    a(f'''
s_load_dwordx2 s[48:49], s[0:1], 104
s_load_dwordx2 s[50:51], s[0:1], 0
s_load_dwordx2 s[52:53], s[0:1], 24
s_load_dwordx2 s[54:55], s[0:1], 88
v_lshlrev_b32 v{V_O16}, 4, v{V_TID}
v_and_b32 v{V_LANE}, 63, v{V_TID}
v_lshlrev_b32 v{V_L16}, 4, v{V_LANE}
v_mov_b32 v{V_Z}, 0
v_mov_b32 v{V_Z+1}, 0
v_mov_b32 v{V_Z+2}, 0
v_mov_b32 v{V_Z+3}, 0
v_mov_b32 v{V_OOB}, {OOB}
v_mov_b32 v{V_BIG}, {BIG}
v_mov_b32 v{V_K16}, 0x47800000
v_lshrrev_b32 v{TMP}, 6, v{V_TID}
v_readfirstlane_b32 s57, v{TMP}
s_and_b32 s56, s2, 7
s_lshl_b32 s56, s56, 5
s_lshr_b32 s3, s2, 3
s_add_u32 s56, s56, s3
s_waitcnt lgkmcnt(0)
{srd_off(S_Q,48,M.Q_OFF,M.NSLOT*M.CAP2U*16)}
{srd_off(S_M2,48,M.M2_OFF,M.NSLOT*1024)}
{srd(S_M,50,E*8)}
{srd_off(S_MX,48,M.MX_OFF,1024)}
{srd_off(S_FL,48,M.FL_OFF,4)}
{srd(S_DI,52,E*2)}
{srd(S_O,54,E*8)}
''')
    for k in range(7):
        if k<6:
            a(f'v_add_u32 v{TMP}, {k*16384}, v{V_O16}')
            a(f'ds_write_b128 v{TMP}, v[{V_Z}:{V_Z+3}]')
        else:
            a(f'v_add_u32 v{TMP}, {k*16384}, v{V_O16}')
            a(f'v_cmp_gt_u32 vcc, 128, v{V_TID}')
            a(f's_and_saveexec_b64 s[62:63], vcc')
            a(f'ds_write_b128 v{TMP}, v[{V_Z}:{V_Z+3}]')
            a(f's_mov_b64 exec, s[62:63]')
    tA=TMP; tB=TMP+1; rA=TMP+2; rB=TMP+3; mA=TMP+4; mB=TMP+5; fl=TMP+6
    a(f's_mul_i32 s58, s57, 112')
    a(f'v_add_u32 v{rA}, s58, v{V_LANE}')
    a(f'v_add_u32 v{rB}, 56, v{rA}')
    a(f's_lshl_b32 s59, s56, 2')
    a(f'v_lshlrev_b32 v{tA}, 10, v{rA}')
    a(f'v_lshlrev_b32 v{tB}, 10, v{rB}')
    a(f'v_cmp_gt_u32 vcc, 56, v{V_LANE}')
    a(f'v_cndmask_b32 v{tA}, v{V_OOB}, v{tA}, vcc')
    a(f'v_cndmask_b32 v{tB}, v{V_OOB}, v{tB}, vcc')
    a(f'buffer_load_dword v{mA}, v{tA}, s[{S_M2}:{S_M2+3}], s59 offen')
    a(f'buffer_load_dword v{mB}, v{tB}, s[{S_M2}:{S_M2+3}], s59 offen')
    a(f'buffer_load_dword v{fl}, v{V_Z}, s[{S_FL}:{S_FL+3}], 0 offen')
    scale_setup(a,S_MX,V_L16,TMP+8,60)
    a(f'v_readfirstlane_b32 s64, v{fl}')
    a('s_waitcnt lgkmcnt(0)')
    a('s_barrier')
    stamp()
    a('s_cmp_lg_u32 s64, 0')
    a('s_cbranch_scc1 k3_fallback')
    batch_setup2(a,mA,V_IA,V_DA,tA,M.CAP2U,rA,66,V_LANE,56)
    batch_setup2(a,mB,V_IB,V_DB,tB,M.CAP2U,rB,67,V_LANE,56)
    a('''s_mov_b32 s68, 0
s_mov_b32 s69, 0
s_mov_b32 s70, 0
s_mov_b32 s72, 0''')
    a(f'v_readlane_b32 s71, v{V_IA}, 0')
    NW=int(opt.get('k3_nw',4))
    def gen(s):
        for w in range(NW):
            Lns=a.label('k3ns')
            a('s_cmp_lt_u32 s68, s66')
            a(f's_cbranch_scc1 {Lns}')
            a('s_cmp_lg_u32 s69, 0')
            a(f's_cbranch_scc1 {Lns}')
            a(f'v_mov_b32 v{V_IA}, v{V_IB}')
            a(f'v_mov_b32 v{V_DA}, v{V_DB}')
            a('s_mov_b32 s66, s67')
            a('s_mov_b32 s68, 0')
            a('s_mov_b32 s69, 1')
            a('s_mov_b32 s70, 0')
            a(f'v_readlane_b32 s71, v{V_IA}, 0')
            a(f'{Lns}:')
            g=TMP+w
            gen_window(a,V_IA,V_DA,V_LANE,g,70,71,72,68,76,77,'k3')
            a('s_add_u32 s68, s68, 64')
            a(f'v_lshlrev_b32 v{g}, 4, v{g}')
            a(f'buffer_load_dwordx4 v[{REC(s,w)}:{REC(s,w)+3}], v{g}, s[{S_Q}:{S_Q+3}], 0 offen{ld}')
    def accum(w0,w1,P):
        u0=P; u1=P+1; ad=P+2; ad2=P+3; X=P+4
        a(f'v_or_b32 v{ad2}, v{w0}, v{w1}')
        a(f'v_and_b32 v{u0}, s73, v{w0}')
        a(f'v_cmp_eq_u32 vcc, 0, v{ad2}')
        a(f'v_and_b32 v{u1}, s73, v{w1}')
        a(f'v_lshl_or_b32 v{u0}, v{u1}, 6, v{u0}')
        a(f'v_and_b32 v{u1}, 0xffff, v{u0}')
        a(f'v_lshrrev_b32 v{u0}, 10, v{u0}')
        a(f'v_lshl_or_b32 v{ad}, v{u1}, 3, v{u0}')
        a(f'v_cndmask_b32 v{ad}, v{ad}, v{V_BIG}, vcc')
        a(f'v_and_b32 v{u0}, s74, v{w0}')
        a(f'v_and_b32 v{u1}, s74, v{w1}')
        a(f'v_add_u32 v{ad2}, {2*CS}, v{ad}')
        a(f'v_fma_mix_f32 v{X}, v{u0}, v{V_K16}, 0 op_sel:[0,0,0] op_sel_hi:[1,0,0]')
        a(f'v_fma_mix_f32 v{X+2}, v{u0}, v{V_K16}, 0 op_sel:[1,0,0] op_sel_hi:[1,0,0]')
        a(f'v_fma_mix_f32 v{X+4}, v{u1}, v{V_K16}, 0 op_sel:[0,0,0] op_sel_hi:[1,0,0]')
        a(f'v_fma_mix_f32 v{X+6}, v{u1}, v{V_K16}, 0 op_sel:[1,0,0] op_sel_hi:[1,0,0]')
        for k in range(4): a(f'v_cvt_i32_f32 v{X+2*k}, v{X+2*k}')
        for k in range(4): a(f'v_ashrrev_i32 v{X+2*k+1}, 31, v{X+2*k}')
        a(f'ds_add_u64 v{ad}, v[{X}:{X+1}]')
        a(f'ds_add_u64 v{ad}, v[{X+2}:{X+3}] offset:{CS}')
        a(f'ds_add_u64 v{ad2}, v[{X+4}:{X+5}]')
        a(f'ds_add_u64 v{ad2}, v[{X+6}:{X+7}] offset:{CS}')
    a('s_mov_b32 s73, 0x00070007')
    a('s_mov_b32 s74, 0xfff8fff8')
    gen(0)
    stamp()
    a('k3_loop:')
    for s in range(2):
        Ln=a.label('k3n'); Lj=a.label('k3j'); Lg=a.label('k3g')
        a('s_cmp_eq_u32 s69, 0')
        a(f's_cbranch_scc1 {Lg}')
        a('s_cmp_lt_u32 s68, s66')
        a(f's_cbranch_scc0 {Ln}')
        a(f'{Lg}:')
        gen(1-s)
        a(f's_waitcnt vmcnt({NW})')
        a('s_mov_b32 s75, 1')
        a(f's_branch {Lj}')
        a(f'{Ln}:')
        a('s_waitcnt vmcnt(0)')
        a('s_mov_b32 s75, 0')
        a(f'{Lj}:')
        for w in range(NW):
            R=REC(s,w)
            accum(R,R+1,TMP+24)
            accum(R+2,R+3,TMP+36)
        a('s_cmp_eq_u32 s75, 0')
        a('s_cbranch_scc1 k3_done')
    a('s_branch k3_loop')
    a('k3_fallback:')
    a(f'''s_load_dwordx2 s[66:67], s[0:1], 8
s_load_dwordx2 s[68:69], s[0:1], 16
s_load_dwordx2 s[70:71], s[0:1], 32
s_load_dwordx2 s[72:73], s[0:1], 48
s_waitcnt lgkmcnt(0)
s_load_dword s74, s[72:73], 0
{srd(S_IN,66,T*4)}
{srd(S_OU,68,T*4)}
{srd(S_AN,70,T*2)}
s_waitcnt lgkmcnt(0)
s_lshl_b32 s74, s74, 16
v_mov_b32 v{TMP}, 0x3e22f983
v_mul_f32 v{TMP}, s74, v{TMP}
s_lshl_b32 s75, s60, 23
v_mov_b32 v{TMP+1}, s75
s_mov_b32 s76, 0
v_lshlrev_b32 v{TMP+2}, 2, v{V_TID}
v_lshlrev_b32 v{TMP+3}, 1, v{V_TID}
k3_fb_loop:
s_lshl_b32 s77, s76, 2
s_lshl_b32 s78, s76, 1
buffer_load_dword v{TMP+4}, v{TMP+2}, s[{S_OU}:{S_OU+3}], s77 offen
buffer_load_dword v{TMP+5}, v{TMP+2}, s[{S_IN}:{S_IN+3}], s77 offen
buffer_load_ushort v{TMP+6}, v{TMP+3}, s[{S_AN}:{S_AN+3}], s78 offen
s_waitcnt vmcnt(0)
v_bfe_u32 v{TMP+7}, v{TMP+4}, 4, 8
v_cmp_eq_u32 vcc, s56, v{TMP+7}
s_and_saveexec_b64 s[62:63], vcc
s_cbranch_execz k3_fb_skip
v_lshlrev_b32 v{TMP+5}, 3, v{TMP+5}
buffer_load_dwordx2 v[{TMP+8}:{TMP+9}], v{TMP+5}, s[{S_M}:{S_M+3}], 0 offen
v_lshlrev_b32 v{TMP+6}, 16, v{TMP+6}
v_mul_f32 v{TMP+6}, v{TMP}, v{TMP+6}
v_fract_f32 v{TMP+6}, v{TMP+6}
v_cos_f32 v{TMP+6}, v{TMP+6}
v_lshrrev_b32 v{TMP+7}, 8, v{TMP+4}
v_bfi_b32 v{TMP+7}, 15, v{TMP+4}, v{TMP+7}
v_lshlrev_b32 v{TMP+7}, 3, v{TMP+7}
v_mul_f32 v{TMP+6}, v{TMP+6}, v{V_K16}
v_add_u32 v{TMP+10}, {2*CS}, v{TMP+7}
s_waitcnt vmcnt(0)
v_lshlrev_b32 v{TMP+12}, 16, v{TMP+8}
v_and_b32 v{TMP+14}, 0xffff0000, v{TMP+8}
v_lshlrev_b32 v{TMP+16}, 16, v{TMP+9}
v_and_b32 v{TMP+18}, 0xffff0000, v{TMP+9}
v_mul_f32 v{TMP+12}, v{TMP+1}, v{TMP+12}
v_mul_f32 v{TMP+14}, v{TMP+1}, v{TMP+14}
v_mul_f32 v{TMP+16}, v{TMP+1}, v{TMP+16}
v_mul_f32 v{TMP+18}, v{TMP+1}, v{TMP+18}
v_mul_f32 v{TMP+12}, v{TMP+6}, v{TMP+12}
v_mul_f32 v{TMP+14}, v{TMP+6}, v{TMP+14}
v_mul_f32 v{TMP+16}, v{TMP+6}, v{TMP+16}
v_mul_f32 v{TMP+18}, v{TMP+6}, v{TMP+18}
v_cvt_i32_f32 v{TMP+12}, v{TMP+12}
v_cvt_i32_f32 v{TMP+14}, v{TMP+14}
v_cvt_i32_f32 v{TMP+16}, v{TMP+16}
v_cvt_i32_f32 v{TMP+18}, v{TMP+18}
v_ashrrev_i32 v{TMP+13}, 31, v{TMP+12}
v_ashrrev_i32 v{TMP+15}, 31, v{TMP+14}
v_ashrrev_i32 v{TMP+17}, 31, v{TMP+16}
v_ashrrev_i32 v{TMP+19}, 31, v{TMP+18}
ds_add_u64 v{TMP+7}, v[{TMP+12}:{TMP+13}]
ds_add_u64 v{TMP+7}, v[{TMP+14}:{TMP+15}] offset:{CS}
ds_add_u64 v{TMP+10}, v[{TMP+16}:{TMP+17}]
ds_add_u64 v{TMP+10}, v[{TMP+18}:{TMP+19}] offset:{CS}
k3_fb_skip:
s_mov_b64 exec, s[62:63]
s_add_u32 s76, s76, 1024
s_cmp_lt_u32 s76, {T}
s_cbranch_scc1 k3_fb_loop
''')
    a('k3_done:')
    stamp()
    if opt.get('prof')=='k3':
        a('s_memrealtime s[94:95]')
        a('s_waitcnt lgkmcnt(0)')
        a('s_sub_u32 s94, s94, s92')
        a(f'v_writelane_b32 v{PV+1}, s94, 62')
        a('s_mov_b32 s101, s93')
        a('s_mov_b32 s53, s92')
        a(f'v_writelane_b32 v{PV+1}, s92, 61')
    a(f'''s_load_dwordx2 s[48:49], s[0:1], 40
s_load_dwordx2 s[50:51], s[0:1], 56
s_load_dwordx2 s[52:53], s[0:1], 64
s_load_dwordx2 s[54:55], s[0:1], 72
s_load_dwordx2 s[58:59], s[0:1], 80
s_waitcnt lgkmcnt(0)
s_load_dwordx4 s[64:67], s[48:49], 0
s_load_dwordx8 s[68:75], s[54:55], 0
s_load_dwordx8 s[76:83], s[58:59], 0
s_load_dwordx16 s[84:99], s[50:51], 0
s_load_dwordx16 s[8:23], s[52:53], 0
s_waitcnt vmcnt(0) lgkmcnt(0)
s_barrier
''')
    a('s_sub_u32 s61, 238, s60')
    a('s_max_i32 s61, s61, 1')
    a('s_lshl_b32 s61, s61, 23')
    if opt.get('prof')=='k3':
        a('s_memtime s[48:49]')
        a('s_waitcnt lgkmcnt(0)')
        a(f'v_writelane_b32 v{PV}, s48, 4')
    WR=84; WSB=8; WD=68; WU=76; CE=64
    for k in range(4):
        l=TMP; e8=TMP+1; e2=TMP+2
        a(f'v_add_u32 v{l}, {1024*k}, v{V_TID}')
        a(f'v_lshrrev_b32 v{e8}, 4, v{l}')
        a(f'v_lshlrev_b32 v{e8}, 12, v{e8}')
        a(f'v_and_b32 v{e2}, 15, v{l}')
        a(f'v_or_b32 v{e8}, v{e8}, v{e2}')
        a(f's_lshl_b32 s3, s56, 4')
        a(f'v_or_b32 v{e8}, s3, v{e8}')
        if k==3:
            a(f'v_cmp_gt_u32 vcc, 64, v{V_TID}')
            a(f's_and_saveexec_b64 s[62:63], vcc')
            a(f's_cbranch_execz k3_fin_skip')
        a(f'v_lshlrev_b32 v{e2}, 1, v{e8}')
        a(f'v_lshlrev_b32 v{e8}, 3, v{e8}')
        a(f'v_lshlrev_b32 v{l}, 3, v{l}')
        MM=TMP+4; DI=TMP+6; AC=TMP+8
        a(f'buffer_load_dwordx2 v[{MM}:{MM+1}], v{e8}, s[{S_M}:{S_M+3}], 0 offen')
        a(f'buffer_load_ushort v{DI}, v{e2}, s[{S_DI}:{S_DI+3}], 0 offen')
        a(f'v_add_u32 v{TMP+3}, {2*CS}, v{l}')
        a(f'ds_read_b64 v[{AC}:{AC+1}], v{l}')
        a(f'ds_read_b64 v[{AC+2}:{AC+3}], v{l} offset:{CS}')
        a(f'ds_read_b64 v[{AC+4}:{AC+5}], v{TMP+3}')
        a(f'ds_read_b64 v[{AC+6}:{AC+7}], v{TMP+3} offset:{CS}')
        a('s_waitcnt vmcnt(0) lgkmcnt(0)')
        SV=TMP+16
        for c in range(4):
            a(f'v_cvt_f32_i32 v{SV+c}, v{AC+2*c+1}')
            a(f'v_cvt_f32_u32 v{TMP+20}, v{AC+2*c}')
            a(f'v_mov_b32 v{TMP+21}, 0x4f800000')
            a(f'v_fma_f32 v{SV+c}, v{SV+c}, v{TMP+21}, v{TMP+20}')
            a(f'v_mul_f32 v{SV+c}, s61, v{SV+c}')
        a(f'v_lshlrev_b32 v{DI}, 16, v{DI}')
        RB=TMP+24
        for r in range(8):
            bf_to_v(a,TMP+20,CE,r)
            a(f'v_sub_f32 v{TMP+20}, v{DI}, v{TMP+20}')
            a(f'v_mul_f32 v{TMP+20}, v{TMP+20}, v{TMP+20}')
            a(f'v_mul_f32 v{TMP+20}, 0xc166d4ca, v{TMP+20}')
            a(f'v_exp_f32 v{RB+r}, v{TMP+20}')
        G=TMP+32; Hh=TMP+36; SD=TMP+40; U=TMP+44
        for c in range(4):
            for r in range(8):
                bf_to_v(a,TMP+20,WSB,r*4+c)
                a(f'v_mul_f32 v{G+c}, v{RB+r}, v{TMP+20}' if r==0 else f'v_fmac_f32 v{G+c}, v{RB+r}, v{TMP+20}')
                bf_to_v(a,TMP+21,WR,r*4+c)
                a(f'v_mul_f32 v{Hh+c}, v{RB+r}, v{TMP+21}' if r==0 else f'v_fmac_f32 v{Hh+c}, v{RB+r}, v{TMP+21}')
        for c in range(4):
            for j in range(4):
                bf_to_v(a,TMP+20,WD,j*4+c)
                a(f'v_mul_f32 v{SD+c}, v{SV+j}, v{TMP+20}' if j==0 else f'v_fmac_f32 v{SD+c}, v{SV+j}, v{TMP+20}')
            a(f'v_mul_f32 v{SD+c}, v{SD+c}, v{G+c}')
        for c in range(4):
            for j in range(4):
                bf_to_v(a,TMP+20,WU,j*4+c)
                a(f'v_mul_f32 v{U+c}, v{SD+j}, v{TMP+20}' if j==0 else f'v_fmac_f32 v{U+c}, v{SD+j}, v{TMP+20}')
        O=TMP+48
        a(f'v_lshlrev_b32 v{O}, 16, v{MM}')
        a(f'v_and_b32 v{O+1}, 0xffff0000, v{MM}')
        a(f'v_lshlrev_b32 v{O+2}, 16, v{MM+1}')
        a(f'v_and_b32 v{O+3}, 0xffff0000, v{MM+1}')
        for c in range(4): a(f'v_fmac_f32 v{O+c}, v{U+c}, v{Hh+c}')
        a(f'v_cvt_pk_bf16_f32 v{O+4}, v{O}, v{O+1}')
        a(f'v_cvt_pk_bf16_f32 v{O+5}, v{O+2}, v{O+3}')
        a(f'buffer_store_dwordx2 v[{O+4}:{O+5}], v{e8}, s[{S_O}:{S_O+3}], 0 offen')
    a('k3_fin_skip:')
    a('s_mov_b64 exec, -1')
    a('s_waitcnt vmcnt(0)')
    if opt.get('prof')=='k3':
        a('s_memtime s[48:49]')
        a('s_load_dwordx2 s[50:51], s[0:1], 104')
        a('s_waitcnt lgkmcnt(0)')
        a(f'v_writelane_b32 v{PV}, s48, 5')
        a('s_memrealtime s[48:49]')
        a('s_waitcnt lgkmcnt(0)')
        a(f'v_readlane_b32 s52, v{PV+1}, 61')
        a('s_nop 3')
        a('s_sub_u32 s48, s48, s52')
        a(f'v_writelane_b32 v{PV+1}, s48, 63')
        a(srd_off(36,50,M.FL_OFF+4096,4096*512))
        a('s_lshl_b32 s50, s2, 4')
        a('s_add_u32 s50, s50, s57')
        a('s_lshl_b32 s50, s50, 9')
        a(f'v_lshlrev_b32 v{TMP}, 2, v{V_LANE}')
        a(f'buffer_store_dword v{PV}, v{TMP}, s[36:39], s50 offen')
        a(f'buffer_store_dword v{PV+1}, v{TMP}, s[36:39], s50 offen offset:256')
        a('s_waitcnt vmcnt(0)')
    a('k3_end:')
    a.end(min(128,TMP+57), 102)
```

```python
from asmlib import *
import main as M
from k23 import batch_setup2, gen_window, mk_stamp
E=M.E; T=M.T; OOB=M.OOB; BIG=M.BIG
LDS3=100352+16

def k3(a,opt,fused=False):
    if not fused: a.begin('acc_kernel')
    CS=3136*8
    CNT=2*CS
    FLG=4*CS
    S_Q,S_M2,S_MX,S_M,S_DI,S_O=8,12,16,24,28,32
    S_IN,S_OU,S_AN=36,40,44
    WD,CE,WU,WSB,WR=12,20,24,36,80
    ld=opt.get('k3_ld',' nt')
    NW=int(opt.get('k3_nw',2)); NS=int(opt.get('k3_ns',2))
    V_TID=0; V_O16=1; V_L16=2; V_LANE=3; V_Z=4
    V_IA,V_DA,V_IB,V_DB=8,9,10,11
    V_ONE=12; V_OOB=13; V_K8=14; V_BIG=15
    PM=16; PD=24; R0=28
    def REC(s,w): return R0+s*4*NW+4*w
    TMP=R0+NS*4*NW
    if TMP%2: TMP+=1
    PV=126
    prof=opt.get('prof')=='k3'
    if not fused: a('s_cmp_ge_u32 s2, 256\ns_cbranch_scc1 k3_end')
    stamp,stt=mk_stamp(a,opt,'k3',[PV,PV+1],sreg=96)
    stamp('rs')
    stamp()
    a(f'''
s_load_dwordx2 s[52:53], s[0:1], 104
s_load_dwordx2 s[54:55], s[0:1], 0
s_load_dwordx2 s[58:59], s[0:1], 24
s_load_dwordx2 s[62:63], s[0:1], 88
v_lshlrev_b32 v{V_O16}, 4, v{V_TID}
v_and_b32 v{V_LANE}, 63, v{V_TID}
v_lshlrev_b32 v{V_L16}, 4, v{V_LANE}
v_mov_b32 v{V_Z}, 0
v_mov_b32 v{V_Z+1}, 0
v_mov_b32 v{V_Z+2}, 0
v_mov_b32 v{V_Z+3}, 0
v_lshrrev_b32 v{TMP}, 6, v{V_TID}
v_readfirstlane_b32 s57, v{TMP}
v_mov_b32 v{V_OOB}, {OOB}
v_mov_b32 v{V_BIG}, {BIG}
v_mov_b32 v{V_K8}, 0x43800000
v_mov_b32 v{V_ONE}, 1
s_and_b32 s56, s2, 7
s_lshl_b32 s56, s56, 5
s_lshr_b32 s3, s2, 3
s_add_u32 s56, s56, s3
''')
    tA=TMP; tB=TMP+1; rA=TMP+2; rB=TMP+3; mA=TMP+4; mB=TMP+5; fl=TMP+6
    a(f's_mul_i32 s60, s57, 112')
    a(f'v_add_u32 v{rA}, s60, v{V_LANE}')
    a(f'v_add_u32 v{rB}, 56, v{rA}')
    a(f's_lshl_b32 s61, s56, 2')
    a(f'v_lshlrev_b32 v{tA}, 10, v{rA}')
    a(f'v_lshlrev_b32 v{tB}, 10, v{rB}')
    a(f'v_cmp_gt_u32 vcc, 56, v{V_LANE}')
    a(f'v_cndmask_b32 v{tA}, v{V_OOB}, v{tA}, vcc')
    a(f'v_cndmask_b32 v{tB}, v{V_OOB}, v{tB}, vcc')
    for k in range(4):
        a(f'ds_write_b128 v{V_O16}, v[{V_Z}:{V_Z+3}] offset:{k*16384}')
    a(f'v_mov_b32 v{TMP+12}, {FLG}')
    a(f'ds_write_b32 v{TMP+12}, v{V_Z}')
    a('s_waitcnt lgkmcnt(0)')
    stamp()
    a(srd_off(S_M2,52,M.M2_OFF,M.NSLOT*1024))
    a(srd_off(S_MX,52,M.MX_OFF,1028))
    a(f'buffer_load_dword v{mA}, v{tA}, s[{S_M2}:{S_M2+3}], s61 offen')
    a(f'buffer_load_dword v{mB}, v{tB}, s[{S_M2}:{S_M2+3}], s61 offen')
    a(f'buffer_load_dword v{fl}, v{V_Z}, s[{S_MX}:{S_MX+3}], 0 offen offset:1024')
    a(f'buffer_load_dwordx4 v[{TMP+8}:{TMP+11}], v{V_L16}, s[{S_MX}:{S_MX+3}], 0 offen')
    a('s_barrier')
    a(srd_off(S_Q,52,M.Q_OFF,M.NSLOT*M.CAP2U*16))
    a(srd(S_M,54,E*8))
    a(srd(S_DI,58,E*2))
    a(srd(S_O,62,E*8))
    def edge_off(k,dst,tmp):
        a(f'v_add_u32 v{tmp}, {1024*k}, v{V_TID}')
        a(f'v_lshrrev_b32 v{dst}, 4, v{tmp}')
        a(f'v_lshlrev_b32 v{dst}, 12, v{dst}')
        a(f'v_and_b32 v{tmp}, 15, v{tmp}')
        a(f'v_or3_b32 v{dst}, v{dst}, v{tmp}, s3')
    def weight_ptrs():
        a('''s_load_dwordx2 s[52:53], s[0:1], 40
s_load_dwordx2 s[54:55], s[0:1], 56
s_load_dwordx2 s[58:59], s[0:1], 64
s_load_dwordx2 s[62:63], s[0:1], 72
s_load_dwordx2 s[78:79], s[0:1], 80''')
    def weight_loads():
        a(f'''s_load_dwordx4 s[{CE}:{CE+3}], s[52:53], 0
s_load_dwordx8 s[{WD}:{WD+7}], s[62:63], 0
s_load_dwordx8 s[{WU}:{WU+7}], s[78:79], 0
s_load_dwordx16 s[{WR}:{WR+15}], s[54:55], 0
s_load_dwordx16 s[{WSB}:{WSB+15}], s[58:59], 0''')
    weight_ptrs()
    stamp()
    a('s_waitcnt vmcnt(0)')
    stamp()
    t=TMP+8
    a(f'v_max_u32 v{t}, v{t}, v{t+1}')
    a(f'v_max_u32 v{t+2}, v{t+2}, v{t+3}')
    a(f'v_max_u32 v{t}, v{t}, v{t+2}')
    M.dpp_max(a,t)
    a(f'v_readlane_b32 s61, v{t}, 63')
    a('s_lshr_b32 s61, s61, 7')
    a('s_sub_u32 s60, 268, s61')
    a('s_min_u32 s60, s60, 254')
    a('s_max_u32 s60, s60, 1')
    a(f'v_readfirstlane_b32 s64, v{fl}')
    batch_setup2(a,mA,V_IA,V_DA,tA,M.CAP2U,rA,66,V_LANE,56)
    batch_setup2(a,mB,V_IB,V_DB,tB,M.CAP2U,rB,67,V_LANE,56)
    a('''s_mov_b32 s68, 0
s_mov_b32 s69, 0
s_mov_b32 s70, 0
s_mov_b32 s72, 0
s_mov_b32 s73, 0x00070007
s_mov_b32 s74, 0xfff8fff8''')
    a(f'v_readlane_b32 s71, v{V_IA}, 0')
    def gen(s):
        for w in range(NW):
            Lns=a.label('k3ns')
            a('s_cmp_lt_u32 s68, s66')
            a(f's_cbranch_scc1 {Lns}')
            a('s_cmp_lg_u32 s69, 0')
            a(f's_cbranch_scc1 {Lns}')
            a(f'v_mov_b32 v{V_IA}, v{V_IB}')
            a(f'v_mov_b32 v{V_DA}, v{V_DB}')
            a('s_mov_b32 s66, s67')
            a('s_mov_b32 s68, 0')
            a('s_mov_b32 s69, 1')
            a('s_mov_b32 s70, 0')
            a(f'v_readlane_b32 s71, v{V_IA}, 0')
            a(f'{Lns}:')
            g=TMP+w
            gen_window(a,V_IA,V_DA,V_LANE,g,70,71,72,68,76,77,'k3')
            a('s_add_u32 s68, s68, 64')
            a(f'v_lshlrev_b32 v{g}, 4, v{g}')
            a(f'buffer_load_dwordx4 v[{REC(s,w)}:{REC(s,w)+3}], v{g}, s[{S_Q}:{S_Q+3}], 0 offen{ld}')
    def accum(w0,P):
        w1=w0+1
        u0=P; u1=P+1; ad=P+2; ac=P+3; X=P+4
        a(f'v_cmp_eq_u64 vcc, 0, v[{w0}:{w1}]')
        a(f'v_and_b32 v{u0}, s73, v{w0}')
        a(f'v_and_b32 v{u1}, s73, v{w1}')
        a(f'v_lshl_or_b32 v{u0}, v{u1}, 6, v{u0}')
        a(f'v_and_b32 v{u1}, 0xffff, v{u0}')
        a(f'v_lshrrev_b32 v{u0}, 10, v{u0}')
        a(f'v_lshl_or_b32 v{ad}, v{u1}, 3, v{u0}')
        a(f'v_and_b32 v{u0}, s74, v{w0}')
        a(f'v_and_b32 v{u1}, s74, v{w1}')
        a(f'v_cndmask_b32 v{ad}, v{ad}, v{V_BIG}, vcc')
        a(f'v_fma_mix_f32 v{X}, v{u0}, v{V_K8}, 0 op_sel:[0,0,0] op_sel_hi:[1,0,0]')
        a(f'v_fma_mix_f32 v{X+1}, v{u0}, v{V_K8}, 0 op_sel:[1,0,0] op_sel_hi:[1,0,0]')
        a(f'v_fma_mix_f32 v{X+2}, v{u1}, v{V_K8}, 0 op_sel:[0,0,0] op_sel_hi:[1,0,0]')
        a(f'v_fma_mix_f32 v{X+3}, v{u1}, v{V_K8}, 0 op_sel:[1,0,0] op_sel_hi:[1,0,0]')
        for k in range(4): a(f'v_cvt_i32_f32 v{X+k}, v{X+k}')
        a(f'v_lshrrev_b32 v{ac}, 1, v{ad}')
        a(f'v_ashrrev_i32 v{u0}, 31, v{X}')
        a(f'v_ashrrev_i32 v{u1}, 31, v{X+2}')
        a(f'v_add_u32 v{X+1}, v{X+1}, v{u0}')
        a(f'v_add_u32 v{X+3}, v{X+3}, v{u1}')
        a(f'ds_add_u64 v{ad}, v[{X}:{X+1}]')
        a(f'ds_add_u64 v{ad}, v[{X+2}:{X+3}] offset:{CS}')
        if not opt.get('k3_nocnt'): a(f'ds_add_u32 v{ac}, v{V_ONE} offset:{CNT}')
    stamp()
    for s_ in range(NS-1): gen(s_)
    stamp()
    def edge0(dst,tmp):
        a(f'v_lshrrev_b32 v{dst}, 2, v{V_TID}')
        a(f'v_lshlrev_b32 v{dst}, 12, v{dst}')
        a(f'v_and_b32 v{tmp}, 3, v{V_TID}')
        a(f'v_lshlrev_b32 v{tmp}, 2, v{tmp}')
        a(f'v_or3_b32 v{dst}, v{dst}, v{tmp}, s3')
    a('s_lshl_b32 s3, s56, 4')
    e=TMP+12; t=TMP+13
    edge0(e,t)
    a(f'v_cmp_gt_u32 vcc, 784, v{V_TID}')
    a(f'v_mov_b32 v{t}, 0x0fffffff')
    a(f'v_cndmask_b32 v{e}, v{t}, v{e}, vcc')
    a(f'v_lshlrev_b32 v{t}, 1, v{e}')
    a(f'v_lshlrev_b32 v{e}, 3, v{e}')
    a(f'buffer_load_dwordx4 v[{PM}:{PM+3}], v{e}, s[{S_M}:{S_M+3}], 0 offen')
    a(f'buffer_load_dwordx4 v[{PM+4}:{PM+7}], v{e}, s[{S_M}:{S_M+3}], 0 offen offset:16')
    a(f'buffer_load_dwordx2 v[{PD}:{PD+1}], v{t}, s[{S_DI}:{S_DI+3}], 0 offen')
    a('s_waitcnt lgkmcnt(0)')
    weight_loads()
    stamp()
    a('s_cmp_lg_u32 s64, 0')
    a('s_cbranch_scc1 k3_fallback')
    a('s_mov_b32 s75, 0')
    first=True
    a('k3_loop:')
    if prof:
        pass
    for s in range(NS):
        Ln=a.label('k3n'); Lj=a.label('k3j'); Lg=a.label('k3g')
        a('s_cmp_eq_u32 s69, 0')
        a(f's_cbranch_scc1 {Lg}')
        a('s_cmp_lt_u32 s68, s66')
        a(f's_cbranch_scc0 {Ln}')
        a(f'{Lg}:')
        gen((s+NS-1)%NS)
        a(f's_waitcnt vmcnt({NW*(NS-1)})')
        a(f's_branch {Lj}')
        a(f'{Ln}:')
        a('s_add_u32 s75, s75, 1')
        a('s_waitcnt vmcnt(0)')
        a(f'{Lj}:')
        for w in range(NW):
            R=REC(s,w)
            accum(R,TMP+8)
            accum(R+2,TMP+16)
        a(f's_cmp_ge_u32 s75, {NS-1}')
        a('s_cbranch_scc1 k3_done')
    a('s_branch k3_loop')
    a('k3_done:')
    stamp()
    a('s_mov_b32 s65, 0')
    a('s_waitcnt vmcnt(0) lgkmcnt(0)')
    a('s_barrier')
    stamp()
    a('s_branch k3_fin')
    a('k3_fallback:')
    a('s_waitcnt vmcnt(0) lgkmcnt(0)')
    a('s_barrier')
    for k in range(7):
        a(f'v_add_u32 v{TMP}, {k*16384}, v{V_O16}')
        if k==6:
            a(f'v_cmp_gt_u32 vcc, 128, v{V_TID}')
            a(f'v_cndmask_b32 v{TMP}, v{V_BIG}, v{TMP}, vcc')
        a(f'ds_write_b128 v{TMP}, v[{V_Z}:{V_Z+3}]')
    a(f'v_mov_b32 v{TMP}, {FLG}')
    a(f'ds_write_b32 v{TMP}, v{V_Z}')
    a(f'''s_load_dwordx2 s[66:67], s[0:1], 8
s_load_dwordx2 s[68:69], s[0:1], 16
s_load_dwordx2 s[70:71], s[0:1], 32
s_load_dwordx2 s[72:73], s[0:1], 48
s_load_dwordx2 s[74:75], s[0:1], 0
s_waitcnt lgkmcnt(0)
s_load_dword s76, s[72:73], 0
{srd(S_IN,66,T*4)}
{srd(S_OU,68,T*4)}
{srd(S_AN,70,T*2)}
{srd(S_M,74,E*8)}
s_waitcnt lgkmcnt(0)
s_barrier
s_lshl_b32 s76, s76, 16
v_mov_b32 v{TMP}, 0x3e22f983
v_mul_f32 v{TMP}, s76, v{TMP}
s_lshl_b32 s75, s60, 23
v_mov_b32 v{TMP+1}, s75
v_mov_b32 v{TMP+11}, 0x47800000
s_mov_b32 s76, 0
v_lshlrev_b32 v{TMP+2}, 2, v{V_TID}
v_lshlrev_b32 v{TMP+3}, 1, v{V_TID}
k3_fb_loop:
s_lshl_b32 s77, s76, 2
s_lshl_b32 s78, s76, 1
buffer_load_dword v{TMP+4}, v{TMP+2}, s[{S_OU}:{S_OU+3}], s77 offen
buffer_load_dword v{TMP+5}, v{TMP+2}, s[{S_IN}:{S_IN+3}], s77 offen
buffer_load_ushort v{TMP+6}, v{TMP+3}, s[{S_AN}:{S_AN+3}], s78 offen
s_waitcnt vmcnt(0)
v_bfe_u32 v{TMP+7}, v{TMP+4}, 4, 8
v_cmp_eq_u32 vcc, s56, v{TMP+7}
s_and_saveexec_b64 s[62:63], vcc
s_cbranch_execz k3_fb_skip
v_lshlrev_b32 v{TMP+5}, 3, v{TMP+5}
buffer_load_dwordx2 v[{TMP+8}:{TMP+9}], v{TMP+5}, s[{S_M}:{S_M+3}], 0 offen
v_lshlrev_b32 v{TMP+6}, 16, v{TMP+6}
v_mul_f32 v{TMP+6}, v{TMP}, v{TMP+6}
v_fract_f32 v{TMP+6}, v{TMP+6}
v_cos_f32 v{TMP+6}, v{TMP+6}
v_lshrrev_b32 v{TMP+7}, 8, v{TMP+4}
v_bfi_b32 v{TMP+7}, 15, v{TMP+4}, v{TMP+7}
v_lshlrev_b32 v{TMP+7}, 3, v{TMP+7}
v_mul_f32 v{TMP+6}, v{TMP+6}, v{TMP+11}
v_add_u32 v{TMP+10}, {2*CS}, v{TMP+7}
s_waitcnt vmcnt(0)
v_lshlrev_b32 v{TMP+12}, 16, v{TMP+8}
v_and_b32 v{TMP+14}, 0xffff0000, v{TMP+8}
v_lshlrev_b32 v{TMP+16}, 16, v{TMP+9}
v_and_b32 v{TMP+18}, 0xffff0000, v{TMP+9}
v_mul_f32 v{TMP+12}, v{TMP+1}, v{TMP+12}
v_mul_f32 v{TMP+14}, v{TMP+1}, v{TMP+14}
v_mul_f32 v{TMP+16}, v{TMP+1}, v{TMP+16}
v_mul_f32 v{TMP+18}, v{TMP+1}, v{TMP+18}
v_mul_f32 v{TMP+12}, v{TMP+6}, v{TMP+12}
v_mul_f32 v{TMP+14}, v{TMP+6}, v{TMP+14}
v_mul_f32 v{TMP+16}, v{TMP+6}, v{TMP+16}
v_mul_f32 v{TMP+18}, v{TMP+6}, v{TMP+18}
v_cvt_i32_f32 v{TMP+12}, v{TMP+12}
v_cvt_i32_f32 v{TMP+14}, v{TMP+14}
v_cvt_i32_f32 v{TMP+16}, v{TMP+16}
v_cvt_i32_f32 v{TMP+18}, v{TMP+18}
v_ashrrev_i32 v{TMP+13}, 31, v{TMP+12}
v_ashrrev_i32 v{TMP+15}, 31, v{TMP+14}
v_ashrrev_i32 v{TMP+17}, 31, v{TMP+16}
v_ashrrev_i32 v{TMP+19}, 31, v{TMP+18}
ds_add_u64 v{TMP+7}, v[{TMP+12}:{TMP+13}]
ds_add_u64 v{TMP+7}, v[{TMP+14}:{TMP+15}] offset:{CS}
ds_add_u64 v{TMP+10}, v[{TMP+16}:{TMP+17}]
ds_add_u64 v{TMP+10}, v[{TMP+18}:{TMP+19}] offset:{CS}
k3_fb_skip:
s_mov_b64 exec, s[62:63]
s_add_u32 s76, s76, 1024
s_cmp_lt_u32 s76, {T}
s_cbranch_scc1 k3_fb_loop
''')
    weight_ptrs()
    a('s_waitcnt vmcnt(0) lgkmcnt(0)')
    weight_loads()
    a('s_mov_b32 s65, 1')
    a('s_waitcnt lgkmcnt(0)')
    a('s_barrier')
    a('k3_fin:')
    a('s_mov_b32 s61, 238')
    a('s_cmp_eq_u32 s65, 0')
    a('s_cselect_b32 s61, 246, s61')
    a('s_sub_u32 s61, s61, s60')
    a('s_max_i32 s61, s61, 1')
    a('s_lshl_b32 s61, s61, 23')
    def sw(sbase,idx):
        s=sbase+idx//2
        if idx&1: a(f's_and_b32 s100, s{s}, 0xffff0000')
        else:     a(f's_lshl_b32 s100, s{s}, 16')
    FB=R0
    SV=lambda c: FB+4*c
    RB=lambda r: FB+16+4*r
    G=lambda c: FB+48+4*c
    H=lambda c: FB+64+4*c
    TT=FB+80
    RA=RB(0); RQ=RB(2); RC=RB(4)
    a('s_mov_b32 s98, 0xc166d4ca')
    a(f'v_cmp_gt_u32 vcc, 784, v{V_TID}')
    a('s_and_saveexec_b64 s[62:63], vcc')
    a('s_cbranch_execz k3_fin_skip')
    a(f'v_lshlrev_b32 v{TT}, 5, v{V_TID}')
    Lm1=a.label('fm1'); Lmj=a.label('fmj')
    a('s_cmp_lg_u32 s65, 0')
    a(f's_cbranch_scc1 {Lm1}')
    a(f'v_lshlrev_b32 v{TT+1}, 4, v{V_TID}')
    a(f'ds_read_b128 v[{RA}:{RA+3}], v{TT}')
    a(f'ds_read_b128 v[{RA+4}:{RA+7}], v{TT} offset:16')
    a(f'ds_read_b128 v[{RQ}:{RQ+3}], v{TT} offset:{CS}')
    a(f'ds_read_b128 v[{RQ+4}:{RQ+7}], v{TT} offset:{CS+16}')
    a(f'ds_read_b128 v[{RC}:{RC+3}], v{TT+1} offset:{CNT}')
    a('s_waitcnt lgkmcnt(0)')
    a(f'v_max3_u32 v{TT+2}, v{RC}, v{RC+1}, v{RC+2}')
    a(f'v_max_u32 v{TT+2}, v{TT+2}, v{RC+3}')
    a(f'v_cmp_lt_u32 vcc, 255, v{TT+2}')
    a(f'v_mov_b32 v{TT+3}, {FLG}')
    a(f'v_cndmask_b32 v{TT+3}, v{V_BIG}, v{TT+3}, vcc')
    a(f'ds_write_b32 v{TT+3}, v{V_ONE}')
    for e_ in range(4):
        for h,R in enumerate((RA,RQ)):
            lo=R+2*e_; hi=lo+1
            a(f'v_ashrrev_i32 v{TT+4}, 31, v{lo}')
            a(f'v_sub_u32 v{hi}, v{hi}, v{TT+4}')
            a(f'v_cvt_f32_i32 v{SV(2*h)+e_}, v{lo}')
            a(f'v_cvt_f32_i32 v{SV(2*h+1)+e_}, v{hi}')
    a(f's_branch {Lmj}')
    a(f'{Lm1}:')
    a(f'v_add_u32 v{TT+1}, {2*CS}, v{TT}')
    for c in range(4):
        ad=TT if c<2 else TT+1
        off=(c&1)*CS
        a(f'ds_read_b128 v[{RA}:{RA+3}], v{ad} offset:{off}')
        a(f'ds_read_b128 v[{RA+4}:{RA+7}], v{ad} offset:{off+16}')
        a('s_waitcnt lgkmcnt(0)')
        for e_ in range(4):
            a(f'v_cvt_f32_i32 v{SV(c)+e_}, v{RA+2*e_+1}')
            a(f'v_cvt_f32_u32 v{TT+4}, v{RA+2*e_}')
            a(f'v_mov_b32 v{TT+5}, 0x4f800000')
            a(f'v_fma_f32 v{SV(c)+e_}, v{SV(c)+e_}, v{TT+5}, v{TT+4}')
    a(f'{Lmj}:')
    stamp()
    def pk(op,d,x,y,extra=''):
        return f'{op} v[{d}:{d+1}], v[{x}:{x+1}], {y}{extra}'
    a('s_mov_b32 s100, s61')
    for c in range(4):
        for p in (0,2): a(f'v_pk_mul_f32 v[{SV(c)+p}:{SV(c)+p+1}], v[{SV(c)+p}:{SV(c)+p+1}], s[100:101] op_sel_hi:[1,0]')
    DI=TT+4
    a(f'v_lshlrev_b32 v{DI}, 16, v{PD}')
    a(f'v_and_b32 v{DI+1}, 0xffff0000, v{PD}')
    a(f'v_lshlrev_b32 v{DI+2}, 16, v{PD+1}')
    a(f'v_and_b32 v{DI+3}, 0xffff0000, v{PD+1}')
    for r in range(8):
        sw(CE,r)
        for p in (0,2): a(f'v_pk_add_f32 v[{RB(r)+p}:{RB(r)+p+1}], v[{DI+p}:{DI+p+1}], s[100:101] op_sel_hi:[1,0] neg_lo:[0,1] neg_hi:[0,1]')
        for p in (0,2): a(f'v_pk_mul_f32 v[{RB(r)+p}:{RB(r)+p+1}], v[{RB(r)+p}:{RB(r)+p+1}], v[{RB(r)+p}:{RB(r)+p+1}]')
        for p in (0,2): a(f'v_pk_mul_f32 v[{RB(r)+p}:{RB(r)+p+1}], v[{RB(r)+p}:{RB(r)+p+1}], s[98:99] op_sel_hi:[1,0]')
        for e_ in range(4): a(f'v_exp_f32 v{RB(r)+e_}, v{RB(r)+e_}')
    stamp()
    def mac(d,x,first):
        for p in (0,2):
            if first: a(f'v_pk_mul_f32 v[{d+p}:{d+p+1}], v[{x+p}:{x+p+1}], s[100:101] op_sel_hi:[1,0]')
            else:     a(f'v_pk_fma_f32 v[{d+p}:{d+p+1}], v[{x+p}:{x+p+1}], s[100:101], v[{d+p}:{d+p+1}] op_sel_hi:[1,0,1]')
    for c in range(4):
        for r in range(8):
            sw(WSB,r*4+c); mac(G(c),RB(r),r==0)
            sw(WR,r*4+c);  mac(H(c),RB(r),r==0)
    for c in range(4):
        for j_ in range(4):
            sw(WD,j_*4+c); mac(RB(c),SV(j_),j_==0)
        for p in (0,2): a(f'v_pk_mul_f32 v[{RB(c)+p}:{RB(c)+p+1}], v[{RB(c)+p}:{RB(c)+p+1}], v[{G(c)+p}:{G(c)+p+1}]')
    for c in range(4):
        for j_ in range(4):
            sw(WU,j_*4+c); mac(RB(4+c),RB(j_),j_==0)
    stamp()
    for e_ in range(4):
        a(f'v_lshlrev_b32 v{SV(0)+e_}, 16, v{PM+2*e_}')
        a(f'v_and_b32 v{SV(1)+e_}, 0xffff0000, v{PM+2*e_}')
        a(f'v_lshlrev_b32 v{SV(2)+e_}, 16, v{PM+2*e_+1}')
        a(f'v_and_b32 v{SV(3)+e_}, 0xffff0000, v{PM+2*e_+1}')
    for c in range(4):
        for p in (0,2): a(f'v_pk_fma_f32 v[{SV(c)+p}:{SV(c)+p+1}], v[{RB(4+c)+p}:{RB(4+c)+p+1}], v[{H(c)+p}:{H(c)+p+1}], v[{SV(c)+p}:{SV(c)+p+1}]')
    O=G(0)
    for e_ in range(4):
        a(f'v_cvt_pk_bf16_f32 v{O+2*e_}, v{SV(0)+e_}, v{SV(1)+e_}')
        a(f'v_cvt_pk_bf16_f32 v{O+2*e_+1}, v{SV(2)+e_}, v{SV(3)+e_}')
    edge0(TT,TT+1)
    a(f'v_lshlrev_b32 v{TT}, 3, v{TT}')
    a(f'buffer_store_dwordx4 v[{O}:{O+3}], v{TT}, s[{S_O}:{S_O+3}], 0 offen')
    a(f'buffer_store_dwordx4 v[{O+4}:{O+7}], v{TT}, s[{S_O}:{S_O+3}], 0 offen offset:16')
    stamp()
    a('k3_fin_skip:')
    a('s_mov_b64 exec, -1')
    a('s_waitcnt lgkmcnt(0)')
    a('s_barrier')
    a('s_cmp_lg_u32 s65, 0')
    a('s_cbranch_scc1 k3_exit')
    a(f'v_mov_b32 v{FB}, {FLG}')
    a(f'ds_read_b32 v{FB+1}, v{FB}')
    a('s_waitcnt lgkmcnt(0)')
    a(f'v_readfirstlane_b32 s64, v{FB+1}')
    a('s_cmp_lg_u32 s64, 0')
    a('s_cbranch_scc1 k3_fallback')
    a('k3_exit:')
    if prof:
        a('s_memtime s[52:53]')
        a('s_load_dwordx2 s[54:55], s[0:1], 104')
        a('s_waitcnt lgkmcnt(0)')
        a(f'v_writelane_b32 v{PV}, s52, {stt["n"]}')
        a('s_memrealtime s[52:53]')
        a('s_waitcnt lgkmcnt(0)')
        a(f'v_writelane_b32 v{PV}, s52, 63')
        a(srd_off(36,54,M.FL_OFF+4096,4096*512))
        a('s_lshl_b32 s50, s2, 4')
        a('s_add_u32 s50, s50, s57')
        a('s_lshl_b32 s50, s50, 9')
        a(f'v_lshlrev_b32 v{TMP}, 2, v{V_LANE}')
        a(f'buffer_store_dword v{PV}, v{TMP}, s[36:39], s50 offen')
        a(f'buffer_store_dword v{PV+1}, v{TMP}, s[36:39], s50 offen offset:256')
        a('s_waitcnt vmcnt(0)')
    a('k3_end:')
    if fused: a('k2_end:')
    nv=max(FB+88,TMP+24)
    if prof or fused: nv=128
    a.end(nv, 102)
```

```python
import sys
from asmlib import *
NAME="gather_scatter__molecular_angular_gemnet__graph"
E=800000; T=25600000
CH1=20000
NCH1=1280
CAP1U=5200
import os
SWAP=int(os.environ.get('SWAP','0'))
RND=7
NSLOT=256*RND
CAP2U=8320
if SWAP:
    Q_OFF=0
    PK_OFF=NSLOT*CAP2U*16
    M1_OFF=PK_OFF+NCH1*CAP1U*24
else:
    PK_OFF=0
    Q_OFF=NCH1*CAP1U*24
    M1_OFF=Q_OFF+NSLOT*CAP2U*16
M2_OFF=M1_OFF+NCH1*1024
MX_OFF=M2_OFF+NSLOT*1024
FL_OFF=MX_OFF+1024
WS_END=FL_OFF+128
assert WS_END<=409600000
OOB=0x80000000
BIG=0x30000

def dpp_scan(a, v):
    for sh in (1,2,4,8):
        a(f'v_add_u32_dpp v{v}, v{v}, v{v} row_shr:{sh} row_mask:0xf bank_mask:0xf bound_ctrl:0')
    a(f'v_add_u32_dpp v{v}, v{v}, v{v} row_bcast:15 row_mask:0xa bank_mask:0xf')
    a(f'v_add_u32_dpp v{v}, v{v}, v{v} row_bcast:31 row_mask:0xc bank_mask:0xf')
def dpp_max(a, v):
    for sh in (1,2,4,8):
        a(f'v_max_u32_dpp v{v}, v{v}, v{v} row_shr:{sh} row_mask:0xf bank_mask:0xf bound_ctrl:0')
    a(f'v_max_u32_dpp v{v}, v{v}, v{v} row_bcast:15 row_mask:0xa bank_mask:0xf')
    a(f'v_max_u32_dpp v{v}, v{v}, v{v} row_bcast:31 row_mask:0xc bank_mask:0xf')

def k1(a, opt):
    a.begin('part_kernel')
    HIST=[0,1024]; OFFS=2048; MAXW=3072; STG=3088
    S_IN,S_OUT,S_ANG,S_PK,S_M1,S_M,S_MX=8,12,16,20,28,32,36
    ld=' nt'
    st=opt.get('k1_st',' sc1')
    V_TID=0; V_O16=1; V_O8=2; V_KF=3; V_Z=4
    def IN(s,j): return 8+s*50+j
    def OU(s,j): return 8+s*50+20+j
    def AN(s,j): return 8+s*50+40+j
    TMP=108
    V_O16M=124; V_O8M=125; V_L16=126; V_ONE=127
    NT=16
    import k23
    a('s_cmp_ge_u32 s2, 256\ns_cbranch_scc1 k1_end')
    stamp,stt=k23.mk_stamp(a,opt,'k1',[122,123],sreg=90)
    stamp('rs')
    stamp()
    a(f'''
s_load_dwordx2 s[4:5], s[0:1], 8
s_load_dwordx2 s[6:7], s[0:1], 16
s_load_dwordx2 s[42:43], s[0:1], 32
s_load_dwordx2 s[44:45], s[0:1], 104
s_load_dwordx2 s[46:47], s[0:1], 0
s_load_dwordx2 s[48:49], s[0:1], 48
v_lshlrev_b32 v{V_O16}, 4, v{V_TID}
v_lshlrev_b32 v{V_O8}, 3, v{V_TID}
v_mov_b32 v{V_Z}, 0
v_mov_b32 v{V_Z+1}, 0
v_mov_b32 v{V_Z+2}, 0
v_mov_b32 v{V_Z+3}, 0
v_mov_b32 v{V_ONE}, 1
v_and_b32 v{V_L16}, 63, v{V_TID}
v_lshlrev_b32 v{V_L16}, 4, v{V_L16}
v_mov_b32 v{TMP}, {OOB}
v_cmp_gt_u32 vcc, 904, v{V_TID}
s_mov_b64 s[56:57], vcc
v_cndmask_b32 v{V_O16M}, v{TMP}, v{V_O16}, vcc
v_cndmask_b32 v{V_O8M}, v{TMP}, v{V_O8}, vcc
v_lshrrev_b32 v{TMP}, 6, v{V_TID}
v_readfirstlane_b32 s58, v{TMP}
s_waitcnt lgkmcnt(0)
s_load_dword s40, s[48:49], 0
{srd(S_IN,4,T*4)}
{srd(S_OUT,6,T*4)}
{srd(S_ANG,42,T*2)}
{srd(S_M,46,E*8)}
{srd_off(S_M1,44,M1_OFF,NCH1*1024)}
{srd_off(S_MX,44,MX_OFF,1028)}
s_add_u32 s52, s44, {PK_OFF}
s_addc_u32 s53, s45, 0
s_mov_b32 s{S_PK}, s52
s_and_b32 s{S_PK+1}, s53, 0xffff
s_mov_b32 s{S_PK+2}, 0
s_mov_b32 s{S_PK+3}, 0x00020000
s_mul_i32 s59, s2, 400000
''')
    a('s_mul_i32 s60, s2, 5')
    def loads(s,k):
        for r in range(5):
            a(f's_add_u32 s50, s59, {k*80000+r*16384}')
            a(f's_lshr_b32 s51, s50, 1')
            vo=V_O16 if r<4 else V_O16M; va=V_O8 if r<4 else V_O8M
            a(f'buffer_load_dwordx4 v[{IN(s,4*r)}:{IN(s,4*r)+3}], v{vo}, s[{S_IN}:{S_IN+3}], s50 offen{ld}')
            a(f'buffer_load_dwordx4 v[{OU(s,4*r)}:{OU(s,4*r)+3}], v{vo}, s[{S_OUT}:{S_OUT+3}], s50 offen{ld}')
            a(f'buffer_load_dwordx2 v[{AN(s,2*r)}:{AN(s,2*r)+1}], v{va}, s[{S_ANG}:{S_ANG+3}], s51 offen{ld}')
    loads(0,0)
    a(f's_mul_i32 s50, s2, 25000')
    for k in range(4):
        a(f's_add_u32 s51, s50, {k*8192}')
        a(f'buffer_load_dwordx2 v[{TMP+2*k}:{TMP+2*k+1}], v{V_O8}, s[{S_M}:{S_M+3}], s51 offen')
    a(f'v_cmp_gt_u32 vcc, 256, v{V_TID}')
    a(f's_and_saveexec_b64 s[62:63], vcc')
    a(f'ds_write_b128 v{V_O16}, v[{V_Z}:{V_Z+3}]')
    a(f's_mov_b64 exec, s[62:63]')
    a(f'''s_waitcnt lgkmcnt(0)
s_lshl_b32 s40, s40, 16
v_mov_b32 v{V_KF}, 0x3e22f983
v_mul_f32 v{V_KF}, s40, v{V_KF}
s_barrier''')
    for k in range(5):
        s=k&1; p=k&1
        H=HIST[p]; HO=HIST[1-p]
        a(f'; ---- chunk {k} ----')
        stamp()
        LP=int(opt.get('k1_lp',2))
        if k==0 and int(opt.get('k1_l0',0)): LP=0
        if k<4 and LP==0: loads(1-s,k+1)
        if k==0:
            a('s_waitcnt vmcnt(15)' if LP==0 else 's_waitcnt vmcnt(0)')
            for q in range(8): a(f'v_and_b32 v{TMP+q}, 0x7fff7fff, v{TMP+q}')
            for q in range(1,8): a(f'v_pk_max_u16 v{TMP}, v{TMP}, v{TMP+q}')
            a(f'v_lshrrev_b32 v{TMP+1}, 16, v{TMP}')
            a(f'v_and_b32 v{TMP}, 0xffff, v{TMP}')
            a(f'v_max_u32 v{TMP}, v{TMP}, v{TMP+1}')
            dpp_max(a,TMP)
            a(f'v_mov_b32 v{TMP+1}, {MAXW}')
            a(f's_mov_b64 s[62:63], exec')
            a(f's_mov_b32 exec_lo, 0')
            a(f's_mov_b32 exec_hi, 0x80000000')
            a(f'ds_max_u32 v{TMP+1}, v{TMP}')
            a(f's_mov_b64 exec, s[62:63]')
        elif k<4: a('s_waitcnt vmcnt(23)' if LP==0 else 's_waitcnt vmcnt(8)')
        else: a('s_waitcnt vmcnt(8)')
        stamp()
        def groupA_issue(r):
            ta=TMP+(r&1)*4
            for q in range(4):
                j=4*r+q; t0=TMP+8; t1=TMP+9
                a(f'v_lshrrev_b32 v{t0}, 8, v{IN(s,j)}')
                a(f'v_lshrrev_b32 v{t1}, 2, v{IN(s,j)}')
                a(f'v_bfi_b32 v{t0}, 15, v{IN(s,j)}, v{t0}')
                a(f'v_lshl_or_b32 v{IN(s,j)}, v{OU(s,j)}, 12, v{t0}')
                a(f'v_and_b32 v{OU(s,j)}, 0x3fc, v{t1}')
                a(f'ds_add_rtn_u32 v{ta+q}, v{OU(s,j)}, v{V_ONE} offset:{H}')
            for h in range(2):
                A=AN(s,2*r+h); c0=TMP+10; c1=TMP+11
                a(f'v_lshlrev_b32 v{c0}, 16, v{A}')
                a(f'v_and_b32 v{c1}, 0xffff0000, v{A}')
                a(f'v_mul_f32 v{c0}, v{V_KF}, v{c0}')
                a(f'v_mul_f32 v{c1}, v{V_KF}, v{c1}')
                a(f'v_fract_f32 v{c0}, v{c0}')
                a(f'v_fract_f32 v{c1}, v{c1}')
                a(f'v_cos_f32 v{c0}, v{c0}')
                a(f'v_cos_f32 v{c1}, v{c1}')
                a(f'v_cvt_pk_f16_f32 v{A}, v{c0}, v{c1}')
        def groupA_fin(r):
            ta=TMP+(r&1)*4
            for q in range(4):
                j=4*r+q
                a(f'v_lshl_or_b32 v{OU(s,j)}, v{ta+q}, 10, v{OU(s,j)}')
        groupA_issue(0)
        for r in range(1,4):
            groupA_issue(r)
            a('s_waitcnt lgkmcnt(4)')
            groupA_fin(r-1)
        a('s_waitcnt lgkmcnt(0)')
        groupA_fin(3)
        a('s_mov_b64 exec, s[56:57]')
        groupA_issue(4)
        a('s_waitcnt lgkmcnt(0)')
        groupA_fin(4)
        a('s_mov_b64 exec, -1')
        if k<4 and LP==1: loads(1-s,k+1)
        stamp()
        a('s_barrier')
        stamp()
        if k<4 and LP==2: loads(1-s,k+1)
        c=TMP; n=TMP+4; e=TMP+8; tot=TMP+12; inc=TMP+13
        a(f'ds_read_b128 v[{c}:{c+3}], v{V_L16} offset:{H}')
        a('s_waitcnt lgkmcnt(0)')
        for q in range(4):
            a(f'v_add_u32 v{n+q}, 3, v{c+q}')
            a(f'v_lshrrev_b32 v{n+q}, 2, v{n+q}')
        a(f'v_add_u32 v{e+2}, v{n}, v{n+1}')
        a(f'v_add_u32 v{e+3}, v{e+2}, v{n+2}')
        a(f'v_add_u32 v{tot}, v{e+3}, v{n+3}')
        a(f'v_mov_b32 v{inc}, v{tot}')
        dpp_scan(a,inc)
        a(f'v_sub_u32 v{e}, v{inc}, v{tot}')
        a(f'v_add_u32 v{e+1}, v{e}, v{n}')
        a(f'v_add_u32 v{e+2}, v{e}, v{e+2}')
        a(f'v_add_u32 v{e+3}, v{e}, v{e+3}')
        a(f'v_readlane_b32 s61, v{inc}, 63')
        for q in range(4): a(f'v_lshl_or_b32 v{n+q}, v{n+q}, 16, v{e+q}')
        for q in range(4): a(f'v_mul_u32_u24 v{e+q}, 24, v{e+q}')
        a(f'ds_write_b128 v{V_L16}, v[{e}:{e+3}] offset:{OFFS}')
        a(f'ds_write_b128 v{V_L16}, v[{V_Z}:{V_Z+3}] offset:{HO}')
        L=a.label('k1w0')
        a('s_cmp_lg_u32 s58, 0')
        a(f's_cbranch_scc1 {L}')
        a(f's_add_u32 s50, s60, {k}')
        a('s_lshl_b32 s50, s50, 10')
        a(f'buffer_store_dwordx4 v[{n}:{n+3}], v{V_L16}, s[{S_M1}:{S_M1+3}], s50 offen')
        if k==0:
            a(f'v_mov_b32 v{c}, {MAXW}')
            a(f'ds_read_b32 v{c+1}, v{c}')
            a('s_lshl_b32 s50, s2, 2')
            a(f'v_mov_b32 v{c}, 0')
            a('s_waitcnt lgkmcnt(0)')
            a(f's_mov_b64 s[62:63], exec')
            a('s_mov_b64 exec, 1')
            a(f'buffer_store_dword v{c+1}, v{c}, s[{S_MX}:{S_MX+3}], s50 offen')
            a(f'buffer_store_dword v{c}, v{c}, s[{S_MX}:{S_MX+3}], 0 offen offset:1024')
            a('s_mov_b64 exec, s[62:63]')
        a(f'{L}:')
        L=a.label('k1w1')
        a('s_cmp_lg_u32 s58, 1')
        a(f's_cbranch_scc1 {L}')
        for q in range(4):
            b=TMP+12; kk=TMP+13; t=TMP+15
            a(f'v_lshrrev_b32 v{b}, 2, v{c+q}')
            a(f'v_mad_u32_u24 v{b}, v{b}, 24, v{e+q}')
            a(f'v_and_b32 v{kk}, 3, v{c+q}')
            a(f'v_add_u32 v{kk}, -1, v{kk}')
            for slot in (1,2,3):
                a(f'v_cmp_gt_u32 vcc, {slot}, v{kk}')
                a(f'v_mov_b32 v{t}, {BIG}')
                a(f'v_cndmask_b32 v{t}, v{t}, v{b}, vcc')
                a(f'ds_write_b16 v{t}, v{V_Z} offset:{STG+16+2*slot}')
        a(f'{L}:')
        a(f's_add_u32 s50, s60, {k}')
        a(f's_mul_i32 s51, s50, {CAP1U*24}')
        a(f's_add_u32 s{S_PK}, s52, s51')
        a(f's_addc_u32 s{S_PK+1}, s53, 0')
        a(f's_and_b32 s{S_PK+1}, s{S_PK+1}, 0xffff')
        a(f's_mul_i32 s{S_PK+2}, s61, 24')
        a(f's_add_u32 s{S_PK+2}, s{S_PK+2}, 127')
        a(f's_and_b32 s{S_PK+2}, s{S_PK+2}, 0xffffff80')
        a('s_waitcnt lgkmcnt(0)')
        if k<4 and LP==4: loads(1-s,k+1)
        stamp()
        def groupC_read(js):
            for i,j in enumerate(js):
                t=TMP+i
                a(f'v_and_b32 v{t}, 0x3ff, v{OU(s,j)}')
                a(f'ds_read_b32 v{t}, v{t} offset:{OFFS}')
        def groupC_write(js,waits):
            for i,j in enumerate(js):
                t=TMP+i; u=TMP+8; w=TMP+9
                a(f'v_lshrrev_b32 v{OU(s,j)}, 10, v{OU(s,j)}')
                a(f'v_mad_u32_u24 v{t}, v{OU(s,j)}, 6, v{t}')
                a(f'v_and_b32 v{u}, 3, v{OU(s,j)}')
                a(f'v_mad_i32_i24 v{w}, v{u}, -2, v{t}')
                a(f'v_mad_i32_i24 v{t}, v{u}, -4, v{t}')
                a(f'ds_write_b32 v{w}, v{IN(s,j)} offset:{STG}')
                A=AN(s,j//2)
                if j&1: a(f'ds_write_b16_d16_hi v{t}, v{A} offset:{STG+16}')
                else:   a(f'ds_write_b16 v{t}, v{A} offset:{STG+16}')
        for g in range(2):
            js=list(range(8*g,8*g+8))
            groupC_read(js)
            a('s_waitcnt lgkmcnt(0)')
            groupC_write(js,False)
        a('s_mov_b64 exec, s[56:57]')
        js=list(range(16,20))
        groupC_read(js)
        a('s_waitcnt lgkmcnt(0)')
        groupC_write(js,False)
        a('s_mov_b64 exec, -1')
        a('s_waitcnt lgkmcnt(0)')
        if k<4 and LP==5: loads(1-s,k+1)
        stamp()
        a('s_barrier')
        stamp()
        if k<4 and LP==3: loads(1-s,k+1)
        D0=8+s*50
        for q in range(8):
            t=TMP+q
            a(f'v_add_u32 v{t}, {q*16384}, v{V_O16}')
            a(f'ds_read_b128 v[{D0+4*q}:{D0+4*q+3}], v{t} offset:{STG}')
        for q in range(8):
            a(f's_waitcnt lgkmcnt({7-q})')
            stp=' nt' if k<int(opt.get('k1_ntk',0)) else st
            a(f'buffer_store_dwordx4 v[{D0+4*q}:{D0+4*q+3}], v{TMP+q}, s[{S_PK}:{S_PK+3}], 0 offen{stp}')
    stamp()
    a('s_waitcnt vmcnt(0) lgkmcnt(0)')
    stamp()
    if opt.get('prof')=='k1':
        stamp('re')
        a(srd_off(8,44,FL_OFF+4096,4096*512))
        a('s_lshl_b32 s50, s2, 4')
        a('s_add_u32 s50, s50, s58')
        a('s_lshl_b32 s50, s50, 9')
        a(f'v_and_b32 v{TMP}, 63, v{V_TID}')
        a(f'v_lshlrev_b32 v{TMP}, 2, v{TMP}')
        a(f'buffer_store_dword v122, v{TMP}, s[8:11], s50 offen')
        a('s_waitcnt vmcnt(0)')
    a('k1_end:')
    a.end(128, 96)

def build(opt={}, with_meta=False, which=('k1','k2','k3')):
    import k23, k3 as K3
    a=Asm()
    if 'k1' in which: k1(a,opt)
    if 'k2' in which: k23.k2(a,opt)
    if 'k3' in which and not opt.get('fuse23'): K3.k3(a,opt)
    hdr=[]
    for l in open('cdna_kernels/%s.s.ref'%NAME).read().split('\n'):
        if l.startswith('; @launch') : break
        if l.startswith('; Override') or l.startswith('; grid='): continue
        hdr.append(l)
    hdr.append('; @launch kernel=part_kernel grid=(256,1,1) block=(1024,1,1) lds=143360')
    hdr.append('; @launch kernel=gath_kernel grid=(256,1,1) block=(1024,1,1) lds=161280')
    hdr.append('; @launch kernel=acc_kernel grid=(256,1,1) block=(1024,1,1) lds=100368')
    return a.text(header_lines=hdr, with_meta=with_meta), a

if __name__=='__main__':
    pass
```

```python
import sys
import main as M
opt={}
for kv in sys.argv[2:]:
    k,v=kv.split('=',1); opt[k]=v.replace('_',' ') if k.endswith(('_ld','_st','_ld2','_ldm')) else v
mode=sys.argv[1] if len(sys.argv)>1 else 'final'
if mode=='final':
    t,a=M.build(opt,False)
    open('cdna_kernels/%s.s'%M.NAME,'w').write(t)
else:
    t,a=M.build(opt,True)
    open('bench/%s.s'%mode,'w').write(t)
print('nops inserted',a.nops,'lines',len(t.split('\n')))
```

```python
from asmlib import *
import main as M
E=M.E; T=M.T; OOB=M.OOB; BIG=M.BIG

def scale_setup(a, S_MX, vL16, t, sdst):
    a(f'buffer_load_dwordx4 v[{t}:{t+3}], v{vL16}, s[{S_MX}:{S_MX+3}], 0 offen')
    a('s_waitcnt vmcnt(0)')
    a(f'v_max_u32 v{t}, v{t}, v{t+1}')
    a(f'v_max_u32 v{t+2}, v{t+2}, v{t+3}')
    a(f'v_max_u32 v{t}, v{t}, v{t+2}')
    M.dpp_max(a,t)
    a(f'v_readlane_b32 s{sdst+1}, v{t}, 63')
    a(f's_lshr_b32 s{sdst+1}, s{sdst+1}, 7')
    a(f's_sub_u32 s{sdst}, 268, s{sdst+1}')
    a(f's_min_u32 s{sdst}, s{sdst}, 254')
    a(f's_max_u32 s{sdst}, s{sdst}, 1')

def batch_setup(a, vmeta, vI, vD, vt, stride_units, vrow, sU):
    a(f'v_lshrrev_b32 v{vI}, 16, v{vmeta}')
    a(f'v_mov_b32 v{vt}, v{vI}')
    M.dpp_scan(a,vI)
    a(f'v_sub_u32 v{vt}, v{vI}, v{vt}')
    a(f'v_and_b32 v{vmeta}, 0xffff, v{vmeta}')
    a(f'v_sub_u32 v{vmeta}, v{vmeta}, v{vt}')
    a(f'v_mov_b32 v{vt}, {stride_units}')
    a(f'v_mad_u32_u24 v{vD}, v{vrow}, v{vt}, v{vmeta}')
    a(f'v_readlane_b32 s{sU}, v{vI}, 63')

def search(a, wins, vI, vD, vLane, sU_list, sT_list, temps):
    n=len(wins)
    for w in wins:
        l4,t,p=temps[w]
        a(f'v_add_u32 v{t}, s{sT_list[w]}, v{vLane}')
        a(f'v_mov_b32 v{l4}, 0')
    for step in (32,16,8,4,2,1):
        for w in wins:
            l4,t,p=temps[w]
            a(f'v_add_u32 v{p}, {(step-1)*4}, v{l4}')
            a(f'ds_bpermute_b32 v{p}, v{p}, v{vI[w]}')
        for i,w in enumerate(wins):
            l4,t,p=temps[w]
            a(f's_waitcnt lgkmcnt({n-1-i})')
            a(f'v_cmp_le_u32 vcc, v{p}, v{t}')
            a(f'v_cndmask_b32 v{p}, 0, {step*4} , vcc'.replace(' ,',',') if step*4<=64 else '')
            if step*4>64:
                a(f'v_cndmask_b32 v{p}, 0, v{temps["c128"]}, vcc')
            a(f'v_add_u32 v{l4}, v{l4}, v{p}')
    for w in wins:
        l4,t,p=temps[w]
        a(f'ds_bpermute_b32 v{l4}, v{l4}, v{vD[w]}')
    for i,w in enumerate(wins):
        l4,t,p=temps[w]
        a(f's_waitcnt lgkmcnt({n-1-i})')
        a(f'v_add_u32 v{l4}, v{l4}, v{t}')


def batch_setup2(a, vmeta, vS, vD, vt, stride_units, vrow, sU, vLane, NF, sent=0x08000000):
    a(f'v_lshrrev_b32 v{vS}, 16, v{vmeta}')
    a(f'v_mov_b32 v{vt}, v{vS}')
    M.dpp_scan(a,vS)
    a(f'v_readlane_b32 s{sU}, v{vS}, 63')
    a(f'v_sub_u32 v{vS}, v{vS}, v{vt}')
    a(f'v_and_b32 v{vmeta}, 0xffff, v{vmeta}')
    a(f'v_sub_u32 v{vmeta}, v{vmeta}, v{vS}')
    a(f'v_mov_b32 v{vt}, {stride_units}')
    a(f'v_mad_u32_u24 v{vD}, v{vrow}, v{vt}, v{vmeta}')
    a(f's_sub_u32 s3, {sent}, s{sU}')
    a(f'v_mov_b32 v{vt}, s3')
    a(f'v_cmp_eq_u32 vcc, {NF}, v{vLane}')
    a(f'v_cndmask_b32 v{vD}, v{vD}, v{vt}, vcc')
    a(f'v_mov_b32 v{vt}, -1')
    a(f'v_cmp_lt_u32 vcc, {NF}, v{vLane}')
    a(f'v_cndmask_b32 v{vS}, v{vS}, v{vt}, vcc')

def gen_window(a, vS, vD, vLane, vG, sL, sS, sDc, sT0, sE, sX, tag):
    L=a.label('gw'+tag); Le=a.label('gwe'+tag)
    a(f'v_mov_b32 v{vG}, s{sDc}')
    a(f's_add_u32 s{sE}, s{sT0}, 64')
    a(f's_cmp_lt_u32 s{sS}, s{sE}')
    a(f's_cbranch_scc0 {Le}')
    a(f'{L}:')
    a(f'v_readlane_b32 s{sDc}, v{vD}, s{sL}')
    a(f's_add_u32 s{sL}, s{sL}, 1')
    a(f's_sub_u32 s{sX}, s{sS}, s{sT0}')
    a(f's_max_i32 s{sX}, s{sX}, 0')
    a(f'v_readlane_b32 s{sS}, v{vS}, s{sL}')
    a(f's_lshl_b64 exec, -1, s{sX}')
    a(f'v_mov_b32 v{vG}, s{sDc}')
    a(f's_cmp_lt_u32 s{sS}, s{sE}')
    a(f's_cbranch_scc1 {L}')
    a(f's_mov_b64 exec, -1')
    a(f'{Le}:')
    a(f'v_add3_u32 v{vG}, v{vG}, s{sT0}, v{vLane}')

def next_window(a, sT0, sUcur, sSW, sUB, vI, vD, vIB, vDB, sTout, sUout):
    pass

def mk_stamp(a,opt,key,vP,sreg=90):
    st={'n':0}
    def stamp(tag=''):
        if opt.get('prof')!=key: return
        if tag in('rs','re'):
            a(f's_memrealtime s[{sreg}:{sreg+1}]')
            a('s_waitcnt lgkmcnt(0)')
            a(f'v_writelane_b32 v{vP[0]}, s{sreg}, {62 if tag=="rs" else 63}')
            return
        i=st['n']; st['n']+=1
        a(f's_memtime s[{sreg}:{sreg+1}]')
        a('s_waitcnt lgkmcnt(0)')
        a(f'v_writelane_b32 v{vP[i//64]}, s{sreg}, {i%64}')
    def dump(srd_tmp, argoff=96):
        if opt.get('prof')!=key: return
        pass
    return stamp,st
def k2(a,opt):
    a.begin('gath_kernel')
    HIST=[0,1024]; OFFS=2048; TAB=3072; STG=TAB+3136*8
    assert STG==28160 and STG+M.CAP2U*16==161280
    S_PK,S_PC,S_M1,S_M,S_MX,S_Q,S_M2,S_FL=8,12,16,20,24,28,32,36
    ld=opt.get('k2_ld',''); st=opt.get('k2_st',' nt')
    V_TID=0; V_O16=1; V_L16=2; V_LANE=3; V_Z=4
    V_IA,V_DA,V_IB,V_DB=8,9,10,11
    V_BIG=12; V_OOB=13; V_ONE=14; V_C128=15
    def KEY(s,j): return 16+s*24+j
    def CC(s,j): return 16+s*24+16+j
    XL=64
    def LO(j): return XL+2*j
    TMP=96
    a(f'''
s_cmp_ge_u32 s2, 256
s_cbranch_scc1 k2_end
''')
    stamp,stt=mk_stamp(a,opt,'k2',[124,125])
    stamp('rs')
    stamp()
    tA=TMP; tB=TMP+1; rA=TMP+2; rB=TMP+3; mA=TMP+4; mB=TMP+5
    TS=TMP+8
    a(f'''
s_load_dwordx2 s[44:45], s[0:1], 104
s_load_dwordx2 s[46:47], s[0:1], 0
v_lshlrev_b32 v{V_O16}, 4, v{V_TID}
v_and_b32 v{V_LANE}, 63, v{V_TID}
v_lshlrev_b32 v{V_L16}, 4, v{V_LANE}
v_mov_b32 v{V_Z}, 0
v_mov_b32 v{V_Z+1}, 0
v_mov_b32 v{V_Z+2}, 0
v_mov_b32 v{V_Z+3}, 0
v_lshrrev_b32 v{TMP}, 6, v{V_TID}
v_readfirstlane_b32 s43, v{TMP}
v_mov_b32 v{V_BIG}, {BIG}
v_mov_b32 v{V_OOB}, {OOB}
v_mov_b32 v{V_ONE}, 1
s_and_b32 s42, s2, 7
s_lshl_b32 s42, s42, 5
s_lshr_b32 s3, s2, 3
s_add_u32 s42, s42, s3
''')
    a(f's_mul_i32 s50, s43, 80')
    a(f'v_add_u32 v{rA}, s50, v{V_LANE}')
    a(f'v_add_u32 v{rB}, 40, v{rA}')
    a(f'v_lshlrev_b32 v{tA}, 10, v{rA}')
    a(f'v_lshlrev_b32 v{tB}, 10, v{rB}')
    a(f'v_cmp_gt_u32 vcc, 40, v{V_LANE}')
    a(f'v_cndmask_b32 v{tA}, v{V_OOB}, v{tA}, vcc')
    a(f'v_cndmask_b32 v{tB}, v{V_OOB}, v{tB}, vcc')
    for k in range(4):
        t=TMP+16+k
        a(f'v_add_u32 v{t}, {1024*k}, v{V_TID}')
        a(f'v_lshrrev_b32 v{TMP+20}, 4, v{t}')
        a(f'v_lshlrev_b32 v{TMP+20}, 15, v{TMP+20}')
        a(f'v_and_b32 v{t}, 15, v{t}')
        a(f'v_lshl_or_b32 v{t}, v{t}, 3, v{TMP+20}')
        if k==3:
            a(f'v_cmp_gt_u32 vcc, 64, v{V_TID}')
            a(f'v_cndmask_b32 v{t}, v{V_OOB}, v{t}, vcc')
    a(f'v_cmp_gt_u32 vcc, 128, v{V_TID}')
    a(f's_and_saveexec_b64 s[62:63], vcc')
    a(f'ds_write_b128 v{V_O16}, v[{V_Z}:{V_Z+3}]')
    a(f's_mov_b64 exec, s[62:63]')
    a('s_lshl_b32 s51, s42, 2')
    a('s_lshl_b32 s54, s42, 7')
    a('s_waitcnt lgkmcnt(0)')
    stamp()
    a(srd_off(S_M1,44,M.M1_OFF,M.NCH1*1024))
    a(f'buffer_load_dword v{mA}, v{tA}, s[{S_M1}:{S_M1+3}], s51 offen')
    a(f'buffer_load_dword v{mB}, v{tB}, s[{S_M1}:{S_M1+3}], s51 offen')
    PO=int(opt.get('k2_po',0))
    a(srd_off(S_MX,44,M.MX_OFF,1024))
    a(srd(S_M,46,E*8))
    def table_loads():
        a(f'buffer_load_dwordx4 v[{TMP+24}:{TMP+27}], v{V_L16}, s[{S_MX}:{S_MX+3}], 0 offen')
        for k in range(4):
            a(f'buffer_load_dwordx2 v[{TS+2*k}:{TS+2*k+1}], v{TMP+16+k}, s[{S_M}:{S_M+3}], s54 offen')
    if PO==0: table_loads()
    a(srd_off(S_PK,44,M.PK_OFF,M.NCH1*M.CAP1U*24))
    a(srd_off(S_M2,44,M.M2_OFF,M.NSLOT*1024))
    a(srd_off(S_FL,44,M.FL_OFF,4))
    a(f'''s_add_u32 s52, s44, {M.Q_OFF}
s_addc_u32 s53, s45, 0
s_mov_b32 s{S_Q}, s52
s_and_b32 s{S_Q+1}, s53, 0xffff
s_mov_b32 s{S_Q+2}, 0
s_mov_b32 s{S_Q+3}, 0x00020000''')
    stamp()
    a('s_waitcnt vmcnt(5)' if PO==0 else 's_waitcnt vmcnt(0)')
    stamp()
    batch_setup2(a,mA,V_IA,V_DA,tA,M.CAP1U,rA,46,V_LANE,40,7000000)
    batch_setup2(a,mB,V_IB,V_DB,tB,M.CAP1U,rB,47,V_LANE,40,7000000)
    a('''s_add_u32 s48, s46, 63
s_lshr_b32 s48, s48, 6
s_add_u32 s49, s47, 63
s_lshr_b32 s49, s49, 6
s_add_u32 s50, s48, s49''')
    Lok=a.label('k2ok')
    a(f's_cmp_le_u32 s50, {4*M.RND}')
    a(f's_cbranch_scc1 {Lok}')
    a(f'buffer_store_dword v{V_ONE}, v{V_Z}, s[{S_FL}:{S_FL+3}], 0 offen sc0 sc1')
    a('s_waitcnt vmcnt(0)')
    a(f'{Lok}:')
    a('''s_mov_b32 s64, 0
s_mov_b32 s65, 0
s_mov_b32 s66, 0
s_mov_b32 s68, 0''')
    a(f'v_readlane_b32 s67, v{V_IA}, 0')
    def gen(rnd,s):
        for w in range(4):
            Lns=a.label('k2ns')
            a('s_cmp_lt_u32 s64, s46')
            a(f's_cbranch_scc1 {Lns}')
            a('s_cmp_lg_u32 s65, 0')
            a(f's_cbranch_scc1 {Lns}')
            a(f'v_mov_b32 v{V_IA}, v{V_IB}')
            a(f'v_mov_b32 v{V_DA}, v{V_DB}')
            a('s_mov_b32 s46, s47')
            a('s_mov_b32 s64, 0')
            a('s_mov_b32 s65, 1')
            a('s_mov_b32 s66, 0')
            a(f'v_readlane_b32 s67, v{V_IA}, 0')
            a(f'{Lns}:')
            g=TMP+2*w; p=g+1
            gen_window(a,V_IA,V_DA,V_LANE,g,66,67,68,64,69,70,'k2')
            a('s_add_u32 s64, s64, 64')
            a(f'v_mul_u32_u24 v{g}, 24, v{g}')
            a(f'buffer_load_dwordx4 v[{KEY(s,4*w)}:{KEY(s,4*w)+3}], v{g}, s[{S_PK}:{S_PK+3}], 0 offen{ld}')
            a(f'buffer_load_dwordx2 v[{CC(s,2*w)}:{CC(s,2*w)+1}], v{g}, s[{S_PK}:{S_PK+3}], 0 offen offset:16{opt.get("k2_ld2",ld)}')
    stamp()
    gen(0,0)
    stamp()
    if PO==1: table_loads()
    a('s_waitcnt vmcnt(8)' if PO==0 else 's_waitcnt vmcnt(0)')
    stamp()
    t=TMP+24
    a(f'v_max_u32 v{t}, v{t}, v{t+1}')
    a(f'v_max_u32 v{t+2}, v{t+2}, v{t+3}')
    a(f'v_max_u32 v{t}, v{t}, v{t+2}')
    M.dpp_max(a,t)
    a(f'v_readlane_b32 s41, v{t}, 63')
    a('s_lshr_b32 s41, s41, 7')
    a('s_sub_u32 s40, 268, s41')
    a('s_min_u32 s40, s40, 254')
    a('s_max_u32 s40, s40, 1')
    a('s_lshl_b32 s41, s40, 23')
    for k in range(4):
        x=TMP+24
        for h in range(2):
            src=TS+2*k+h
            a(f'v_lshlrev_b32 v{x}, 16, v{src}')
            a(f'v_and_b32 v{x+1}, 0xffff0000, v{src}')
            a(f'v_mul_f32 v{x}, s41, v{x}')
            a(f'v_mul_f32 v{x+1}, s41, v{x+1}')
            a(f'v_cvt_pk_f16_f32 v{src}, v{x}, v{x+1}')
        a(f'v_add_u32 v{x}, {1024*k}, v{V_TID}')
        a(f'v_lshlrev_b32 v{x}, 3, v{x}')
        if k==3:
            a(f'v_cmp_gt_u32 vcc, 64, v{V_TID}')
            a(f's_and_saveexec_b64 s[62:63], vcc')
        a(f'ds_write_b64 v{x}, v[{TS+2*k}:{TS+2*k+1}] offset:{TAB}')
        if k==3: a(f's_mov_b64 exec, s[62:63]')
    a('s_mov_b32 s72, 0x00070007')
    a(f's_mov_b32 s73, {BIG}')
    a('s_waitcnt lgkmcnt(0)')
    a('s_barrier')
    for r in range(M.RND):
        s=r&1; p=r&1; H=HIST[p]; HO=HIST[1-p]
        a(f'; ---- round {r} ----')
        stamp()
        LP=int(opt.get('k2_lp',4))
        if r==0 and int(opt.get('k2_l0',0)): LP=0
        if r+1<M.RND and LP==0:
            gen(r+1,1-s)
            stamp()
            a(f's_waitcnt vmcnt({8 if r==0 else 17})')
        else:
            stamp()
            a(f's_waitcnt vmcnt({0 if r==0 else 9})')
        stamp()
        def issue(g):
            hb=TMP+(g&1)*8
            for q in range(4):
                j=4*g+q; K=KEY(s,j); t=TMP+16
                a(f'v_lshlrev_b32 v{t}, 3, v{K}')
                a(f'v_and_b32 v{t}, 0x7ff8, v{t}')
                a(f'ds_read_b64 v[{LO(j)}:{LO(j)+1}], v{t} offset:{TAB}')
            for q in range(4):
                j=4*g+q; K=KEY(s,j); C=CC(s,j//2); h=hb+q
                if j&1: a(f'v_cmp_lt_u32 vcc, 0xffff, v{C}')
                else:   a(f'v_cmp_ne_u16 vcc, 0, v{C}')
                a(f'v_lshrrev_b32 v{h}, 14, v{K}')
                a(f'v_and_b32 v{h}, 0x3fc, v{h}')
                a(f'v_cndmask_b32 v{h}, v{V_BIG}, v{h}, vcc')
                a(f'ds_add_rtn_u32 v{hb+4+q}, v{h}, v{V_ONE} offset:{H}')
        def finish(g,wait_tab,wait_rtn):
            hb=TMP+(g&1)*8
            a(f's_waitcnt lgkmcnt({wait_tab})')
            for q in range(4):
                j=4*g+q; K=KEY(s,j); C=CC(s,j//2); t0=TMP+17; t1=TMP+18; t2=TMP+19
                sel='op_sel:[0,1] op_sel_hi:[1,1]' if j&1 else 'op_sel:[0,0] op_sel_hi:[1,0]'
                a(f'v_pk_mul_f16 v{LO(j)}, v{LO(j)}, v{C} {sel}')
                a(f'v_pk_mul_f16 v{LO(j)+1}, v{LO(j)+1}, v{C} {sel}')
                a(f'v_lshrrev_b32 v{t0}, 20, v{K}')
                a(f'v_lshrrev_b32 v{t1}, 12, v{K}')
                a(f'v_bfi_b32 v{t0}, 15, v{t1}, v{t0}')
                a(f'v_add_u32 v{LO(j)}, 0x00040004, v{LO(j)}')
                a(f'v_add_u32 v{LO(j)+1}, 0x00040004, v{LO(j)+1}')
                a(f'v_lshl_or_b32 v{t1}, v{t0}, 13, v{t0}')
                a(f'v_lshrrev_b32 v{t2}, 6, v{t0}')
                a(f'v_bfi_b32 v{LO(j)}, s72, v{t1}, v{LO(j)}')
                a(f'v_lshl_or_b32 v{t2}, v{t2}, 13, v{t2}')
                a(f'v_bfi_b32 v{LO(j)+1}, s72, v{t2}, v{LO(j)+1}')
            a(f's_waitcnt lgkmcnt({wait_rtn})')
            for q in range(4):
                j=4*g+q
                a(f'v_lshl_or_b32 v{KEY(s,j)}, v{hb+4+q}, 18, v{hb+q}')
        issue(0)
        for g in range(1,4):
            issue(g)
            finish(g-1, 12, 8)
        finish(3, 4, 0)
        if r+1<M.RND and LP==1: gen(r+1,1-s)
        stamp()
        a('s_barrier')
        stamp()
        if r+1<M.RND and LP==2: gen(r+1,1-s)
        c=TMP; n=TMP+4; e=TMP+8; tot=TMP+12; inc=TMP+13
        a(f'ds_read_b128 v[{c}:{c+3}], v{V_L16} offset:{H}')
        a('s_waitcnt lgkmcnt(0)')
        for q in range(4):
            a(f'v_add_u32 v{n+q}, 1, v{c+q}')
            a(f'v_lshrrev_b32 v{n+q}, 1, v{n+q}')
        a(f'v_add_u32 v{e+2}, v{n}, v{n+1}')
        a(f'v_add_u32 v{e+3}, v{e+2}, v{n+2}')
        a(f'v_add_u32 v{tot}, v{e+3}, v{n+3}')
        a(f'v_mov_b32 v{inc}, v{tot}')
        M.dpp_scan(a,inc)
        a(f'v_sub_u32 v{e}, v{inc}, v{tot}')
        a(f'v_add_u32 v{e+1}, v{e}, v{n}')
        a(f'v_add_u32 v{e+2}, v{e}, v{e+2}')
        a(f'v_add_u32 v{e+3}, v{e}, v{e+3}')
        a(f'v_readlane_b32 s61, v{inc}, 63')
        for q in range(4): a(f'v_lshl_or_b32 v{n+q}, v{n+q}, 16, v{e+q}')
        for q in range(4): a(f'v_lshlrev_b32 v{e+q}, 4, v{e+q}')
        a(f'ds_write_b128 v{V_L16}, v[{e}:{e+3}] offset:{OFFS}')
        a(f'ds_write_b128 v{V_L16}, v[{V_Z}:{V_Z+3}] offset:{HO}')
        L=a.label('k2w0')
        a('s_cmp_lg_u32 s43, 0')
        a(f's_cbranch_scc1 {L}')
        a(f's_mul_i32 s50, s42, {M.RND}')
        a(f's_add_u32 s50, s50, {r}')
        a('s_lshl_b32 s50, s50, 10')
        a(f'buffer_store_dwordx4 v[{n}:{n+3}], v{V_L16}, s[{S_M2}:{S_M2+3}], s50 offen')
        for q in range(4):
            t=TMP+14; u=TMP+15
            a(f'v_and_b32 v{u}, 1, v{c+q}')
            a(f'v_cmp_eq_u32 vcc, 1, v{u}')
            a(f'v_lshl_add_u32 v{t}, v{c+q}, 3, v{e+q}')
            a(f'v_cndmask_b32 v{t}, v{V_BIG}, v{t}, vcc')
            a(f'ds_write_b64 v{t}, v[{V_Z}:{V_Z+1}] offset:{STG}')
        a(f'{L}:')
        a(f's_mul_i32 s50, s42, {M.RND}')
        a(f's_add_u32 s50, s50, {r}')
        a(f's_mul_i32 s51, s50, {M.CAP2U*16}')
        a(f's_add_u32 s{S_Q}, s52, s51')
        a(f's_addc_u32 s{S_Q+1}, s53, 0')
        a(f's_and_b32 s{S_Q+1}, s{S_Q+1}, 0xffff')
        a(f's_lshl_b32 s{S_Q+2}, s61, 4')
        a(f's_add_u32 s{S_Q+2}, s{S_Q+2}, 127')
        a(f's_and_b32 s{S_Q+2}, s{S_Q+2}, 0xffffff80')
        a('s_waitcnt lgkmcnt(0)')
        if r+1<M.RND and LP==4:
            gen(r+1,1-s)
        stamp()
        for g in range(2):
            js=list(range(8*g,8*g+8))
            for i,j in enumerate(js):
                t=TMP+i
                a(f'v_and_b32 v{t}, 0x3ffff, v{KEY(s,j)}')
                a(f'ds_read_b32 v{t}, v{t} offset:{OFFS}')
            for i,j in enumerate(js):
                t=TMP+i; u=TMP+8
                a(f's_waitcnt lgkmcnt({min(15,7-i+i)})' if False else '')
                if i==0: a('s_waitcnt lgkmcnt(0)')
                a(f'v_lshrrev_b32 v{u}, 18, v{KEY(s,j)}')
                a(f'v_lshl_add_u32 v{t}, v{u}, 3, v{t}')
                a(f'v_and_or_b32 v{t}, v{KEY(s,j)}, s73, v{t}')
                a(f'ds_write_b64 v{t}, v[{LO(j)}:{LO(j)+1}] offset:{STG}')
        a('s_waitcnt lgkmcnt(0)')
        if r+1<M.RND and LP==5: gen(r+1,1-s)
        stamp()
        a('s_barrier')
        stamp()
        if r+1<M.RND and LP==3: gen(r+1,1-s)
        D0=XL
        def dreg(q): return D0+4*q if q<8 else TMP+16
        for q in range(9):
            t=TMP+q
            a(f'v_add_u32 v{t}, {q*16384}, v{V_O16}')
            a(f'ds_read_b128 v[{dreg(q)}:{dreg(q)+3}], v{t} offset:{STG}')
        for q in range(9):
            a(f's_waitcnt lgkmcnt({8-q})')
            stp=st if r<int(opt.get('k2_mr',99)) else ''
            a(f'buffer_store_dwordx4 v[{dreg(q)}:{dreg(q)+3}], v{TMP+q}, s[{S_Q}:{S_Q+3}], 0 offen{stp}')
    stamp()
    a('s_waitcnt vmcnt(0) lgkmcnt(0)')
    stamp()
    if opt.get('prof')=='k2':
        stamp('re')
        a(srd_off(8,44,M.FL_OFF+4096,4096*512))
        a('s_lshl_b32 s50, s2, 4')
        a('s_add_u32 s50, s50, s43')
        a('s_lshl_b32 s50, s50, 9')
        a(f'v_lshlrev_b32 v{TMP}, 2, v{V_LANE}')
        a(f'buffer_store_dword v124, v{TMP}, s[8:11], s50 offen')
        a(f'buffer_store_dword v125, v{TMP}, s[8:11], s50 offen offset:256')
        a('s_waitcnt vmcnt(0)')
    if opt.get('fuse23'):
        a('s_barrier')
        import k3 as K3
        K3.k3(a,opt,fused=True)
        return
    a('k2_end:')
    a.end(128, 100)

def bf_to_v(a, v, sbase, idx):
    s=sbase+idx//2
    if idx&1: a(f's_and_b32 s100, s{s}, 0xffff0000')
    else:     a(f's_lshl_b32 s100, s{s}, 16')
    a(f'v_mov_b32 v{v}, s100')

def k3(a,opt):
    a.begin('acc_kernel')
    CS=3136*8
    S_Q,S_M2,S_MX,S_FL,S_M,S_DI,S_O=8,12,16,20,24,28,32
    S_IN,S_OU,S_AN=36,40,44
    ld=opt.get('k3_ld','')
    V_TID=0; V_O16=1; V_L16=2; V_LANE=3; V_Z=4
    V_IA,V_DA,V_IB,V_DB=8,9,10,11
    V_OOB=13; V_BIG=15; V_K16=14
    NWX=int(opt.get('k3_nw',4))
    def REC(s,w): return 16+s*4*NWX+4*w
    TMP=16+8*NWX
    a(f'''
s_cmp_ge_u32 s2, 256
s_cbranch_scc1 k3_end
''')
    PV=TMP+54
    stamp,stt=mk_stamp(a,opt,'k3',[PV,PV+1],sreg=90)
    if opt.get('prof')=='k3':
        a('s_memrealtime s[92:93]')
    stamp()
    a(f'''
s_load_dwordx2 s[48:49], s[0:1], 104
s_load_dwordx2 s[50:51], s[0:1], 0
s_load_dwordx2 s[52:53], s[0:1], 24
s_load_dwordx2 s[54:55], s[0:1], 88
v_lshlrev_b32 v{V_O16}, 4, v{V_TID}
v_and_b32 v{V_LANE}, 63, v{V_TID}
v_lshlrev_b32 v{V_L16}, 4, v{V_LANE}
v_mov_b32 v{V_Z}, 0
v_mov_b32 v{V_Z+1}, 0
v_mov_b32 v{V_Z+2}, 0
v_mov_b32 v{V_Z+3}, 0
v_mov_b32 v{V_OOB}, {OOB}
v_mov_b32 v{V_BIG}, {BIG}
v_mov_b32 v{V_K16}, 0x47800000
v_lshrrev_b32 v{TMP}, 6, v{V_TID}
v_readfirstlane_b32 s57, v{TMP}
s_and_b32 s56, s2, 7
s_lshl_b32 s56, s56, 5
s_lshr_b32 s3, s2, 3
s_add_u32 s56, s56, s3
s_waitcnt lgkmcnt(0)
{srd_off(S_Q,48,M.Q_OFF,M.NSLOT*M.CAP2U*16)}
{srd_off(S_M2,48,M.M2_OFF,M.NSLOT*1024)}
{srd(S_M,50,E*8)}
{srd_off(S_MX,48,M.MX_OFF,1024)}
{srd_off(S_FL,48,M.FL_OFF,4)}
{srd(S_DI,52,E*2)}
{srd(S_O,54,E*8)}
''')
    for k in range(7):
        if k<6:
            a(f'v_add_u32 v{TMP}, {k*16384}, v{V_O16}')
            a(f'ds_write_b128 v{TMP}, v[{V_Z}:{V_Z+3}]')
        else:
            a(f'v_add_u32 v{TMP}, {k*16384}, v{V_O16}')
            a(f'v_cmp_gt_u32 vcc, 128, v{V_TID}')
            a(f's_and_saveexec_b64 s[62:63], vcc')
            a(f'ds_write_b128 v{TMP}, v[{V_Z}:{V_Z+3}]')
            a(f's_mov_b64 exec, s[62:63]')
    tA=TMP; tB=TMP+1; rA=TMP+2; rB=TMP+3; mA=TMP+4; mB=TMP+5; fl=TMP+6
    a(f's_mul_i32 s58, s57, 112')
    a(f'v_add_u32 v{rA}, s58, v{V_LANE}')
    a(f'v_add_u32 v{rB}, 56, v{rA}')
    a(f's_lshl_b32 s59, s56, 2')
    a(f'v_lshlrev_b32 v{tA}, 10, v{rA}')
    a(f'v_lshlrev_b32 v{tB}, 10, v{rB}')
    a(f'v_cmp_gt_u32 vcc, 56, v{V_LANE}')
    a(f'v_cndmask_b32 v{tA}, v{V_OOB}, v{tA}, vcc')
    a(f'v_cndmask_b32 v{tB}, v{V_OOB}, v{tB}, vcc')
    a(f'buffer_load_dword v{mA}, v{tA}, s[{S_M2}:{S_M2+3}], s59 offen')
    a(f'buffer_load_dword v{mB}, v{tB}, s[{S_M2}:{S_M2+3}], s59 offen')
    a(f'buffer_load_dword v{fl}, v{V_Z}, s[{S_FL}:{S_FL+3}], 0 offen')
    scale_setup(a,S_MX,V_L16,TMP+8,60)
    a(f'v_readfirstlane_b32 s64, v{fl}')
    a('s_waitcnt lgkmcnt(0)')
    a('s_barrier')
    stamp()
    a('s_cmp_lg_u32 s64, 0')
    a('s_cbranch_scc1 k3_fallback')
    batch_setup2(a,mA,V_IA,V_DA,tA,M.CAP2U,rA,66,V_LANE,56)
    batch_setup2(a,mB,V_IB,V_DB,tB,M.CAP2U,rB,67,V_LANE,56)
    a('''s_mov_b32 s68, 0
s_mov_b32 s69, 0
s_mov_b32 s70, 0
s_mov_b32 s72, 0''')
    a(f'v_readlane_b32 s71, v{V_IA}, 0')
    NW=int(opt.get('k3_nw',4))
    def gen(s):
        for w in range(NW):
            Lns=a.label('k3ns')
            a('s_cmp_lt_u32 s68, s66')
            a(f's_cbranch_scc1 {Lns}')
            a('s_cmp_lg_u32 s69, 0')
            a(f's_cbranch_scc1 {Lns}')
            a(f'v_mov_b32 v{V_IA}, v{V_IB}')
            a(f'v_mov_b32 v{V_DA}, v{V_DB}')
            a('s_mov_b32 s66, s67')
            a('s_mov_b32 s68, 0')
            a('s_mov_b32 s69, 1')
            a('s_mov_b32 s70, 0')
            a(f'v_readlane_b32 s71, v{V_IA}, 0')
            a(f'{Lns}:')
            g=TMP+w
            gen_window(a,V_IA,V_DA,V_LANE,g,70,71,72,68,76,77,'k3')
            a('s_add_u32 s68, s68, 64')
            a(f'v_lshlrev_b32 v{g}, 4, v{g}')
            a(f'buffer_load_dwordx4 v[{REC(s,w)}:{REC(s,w)+3}], v{g}, s[{S_Q}:{S_Q+3}], 0 offen{ld}')
    def accum(w0,w1,P):
        u0=P; u1=P+1; ad=P+2; ad2=P+3; X=P+4
        a(f'v_or_b32 v{ad2}, v{w0}, v{w1}')
        a(f'v_and_b32 v{u0}, s73, v{w0}')
        a(f'v_cmp_eq_u32 vcc, 0, v{ad2}')
        a(f'v_and_b32 v{u1}, s73, v{w1}')
        a(f'v_lshl_or_b32 v{u0}, v{u1}, 6, v{u0}')
        a(f'v_and_b32 v{u1}, 0xffff, v{u0}')
        a(f'v_lshrrev_b32 v{u0}, 10, v{u0}')
        a(f'v_lshl_or_b32 v{ad}, v{u1}, 3, v{u0}')
        a(f'v_cndmask_b32 v{ad}, v{ad}, v{V_BIG}, vcc')
        a(f'v_and_b32 v{u0}, s74, v{w0}')
        a(f'v_and_b32 v{u1}, s74, v{w1}')
        a(f'v_add_u32 v{ad2}, {2*CS}, v{ad}')
        a(f'v_fma_mix_f32 v{X}, v{u0}, v{V_K16}, 0 op_sel:[0,0,0] op_sel_hi:[1,0,0]')
        a(f'v_fma_mix_f32 v{X+2}, v{u0}, v{V_K16}, 0 op_sel:[1,0,0] op_sel_hi:[1,0,0]')
        a(f'v_fma_mix_f32 v{X+4}, v{u1}, v{V_K16}, 0 op_sel:[0,0,0] op_sel_hi:[1,0,0]')
        a(f'v_fma_mix_f32 v{X+6}, v{u1}, v{V_K16}, 0 op_sel:[1,0,0] op_sel_hi:[1,0,0]')
        for k in range(4): a(f'v_cvt_i32_f32 v{X+2*k}, v{X+2*k}')
        for k in range(4): a(f'v_ashrrev_i32 v{X+2*k+1}, 31, v{X+2*k}')
        a(f'ds_add_u64 v{ad}, v[{X}:{X+1}]')
        a(f'ds_add_u64 v{ad}, v[{X+2}:{X+3}] offset:{CS}')
        a(f'ds_add_u64 v{ad2}, v[{X+4}:{X+5}]')
        a(f'ds_add_u64 v{ad2}, v[{X+6}:{X+7}] offset:{CS}')
    a('s_mov_b32 s73, 0x00070007')
    a('s_mov_b32 s74, 0xfff8fff8')
    gen(0)
    stamp()
    a('k3_loop:')
    for s in range(2):
        Ln=a.label('k3n'); Lj=a.label('k3j'); Lg=a.label('k3g')
        a('s_cmp_eq_u32 s69, 0')
        a(f's_cbranch_scc1 {Lg}')
        a('s_cmp_lt_u32 s68, s66')
        a(f's_cbranch_scc0 {Ln}')
        a(f'{Lg}:')
        gen(1-s)
        a(f's_waitcnt vmcnt({NW})')
        a('s_mov_b32 s75, 1')
        a(f's_branch {Lj}')
        a(f'{Ln}:')
        a('s_waitcnt vmcnt(0)')
        a('s_mov_b32 s75, 0')
        a(f'{Lj}:')
        for w in range(NW):
            R=REC(s,w)
            accum(R,R+1,TMP+24)
            accum(R+2,R+3,TMP+36)
        a('s_cmp_eq_u32 s75, 0')
        a('s_cbranch_scc1 k3_done')
    a('s_branch k3_loop')
    a('k3_fallback:')
    a(f'''s_load_dwordx2 s[66:67], s[0:1], 8
s_load_dwordx2 s[68:69], s[0:1], 16
s_load_dwordx2 s[70:71], s[0:1], 32
s_load_dwordx2 s[72:73], s[0:1], 48
s_waitcnt lgkmcnt(0)
s_load_dword s74, s[72:73], 0
{srd(S_IN,66,T*4)}
{srd(S_OU,68,T*4)}
{srd(S_AN,70,T*2)}
s_waitcnt lgkmcnt(0)
s_lshl_b32 s74, s74, 16
v_mov_b32 v{TMP}, 0x3e22f983
v_mul_f32 v{TMP}, s74, v{TMP}
s_lshl_b32 s75, s60, 23
v_mov_b32 v{TMP+1}, s75
s_mov_b32 s76, 0
v_lshlrev_b32 v{TMP+2}, 2, v{V_TID}
v_lshlrev_b32 v{TMP+3}, 1, v{V_TID}
k3_fb_loop:
s_lshl_b32 s77, s76, 2
s_lshl_b32 s78, s76, 1
buffer_load_dword v{TMP+4}, v{TMP+2}, s[{S_OU}:{S_OU+3}], s77 offen
buffer_load_dword v{TMP+5}, v{TMP+2}, s[{S_IN}:{S_IN+3}], s77 offen
buffer_load_ushort v{TMP+6}, v{TMP+3}, s[{S_AN}:{S_AN+3}], s78 offen
s_waitcnt vmcnt(0)
v_bfe_u32 v{TMP+7}, v{TMP+4}, 4, 8
v_cmp_eq_u32 vcc, s56, v{TMP+7}
s_and_saveexec_b64 s[62:63], vcc
s_cbranch_execz k3_fb_skip
v_lshlrev_b32 v{TMP+5}, 3, v{TMP+5}
buffer_load_dwordx2 v[{TMP+8}:{TMP+9}], v{TMP+5}, s[{S_M}:{S_M+3}], 0 offen
v_lshlrev_b32 v{TMP+6}, 16, v{TMP+6}
v_mul_f32 v{TMP+6}, v{TMP}, v{TMP+6}
v_fract_f32 v{TMP+6}, v{TMP+6}
v_cos_f32 v{TMP+6}, v{TMP+6}
v_lshrrev_b32 v{TMP+7}, 8, v{TMP+4}
v_bfi_b32 v{TMP+7}, 15, v{TMP+4}, v{TMP+7}
v_lshlrev_b32 v{TMP+7}, 3, v{TMP+7}
v_mul_f32 v{TMP+6}, v{TMP+6}, v{V_K16}
v_add_u32 v{TMP+10}, {2*CS}, v{TMP+7}
s_waitcnt vmcnt(0)
v_lshlrev_b32 v{TMP+12}, 16, v{TMP+8}
v_and_b32 v{TMP+14}, 0xffff0000, v{TMP+8}
v_lshlrev_b32 v{TMP+16}, 16, v{TMP+9}
v_and_b32 v{TMP+18}, 0xffff0000, v{TMP+9}
v_mul_f32 v{TMP+12}, v{TMP+1}, v{TMP+12}
v_mul_f32 v{TMP+14}, v{TMP+1}, v{TMP+14}
v_mul_f32 v{TMP+16}, v{TMP+1}, v{TMP+16}
v_mul_f32 v{TMP+18}, v{TMP+1}, v{TMP+18}
v_mul_f32 v{TMP+12}, v{TMP+6}, v{TMP+12}
v_mul_f32 v{TMP+14}, v{TMP+6}, v{TMP+14}
v_mul_f32 v{TMP+16}, v{TMP+6}, v{TMP+16}
v_mul_f32 v{TMP+18}, v{TMP+6}, v{TMP+18}
v_cvt_i32_f32 v{TMP+12}, v{TMP+12}
v_cvt_i32_f32 v{TMP+14}, v{TMP+14}
v_cvt_i32_f32 v{TMP+16}, v{TMP+16}
v_cvt_i32_f32 v{TMP+18}, v{TMP+18}
v_ashrrev_i32 v{TMP+13}, 31, v{TMP+12}
v_ashrrev_i32 v{TMP+15}, 31, v{TMP+14}
v_ashrrev_i32 v{TMP+17}, 31, v{TMP+16}
v_ashrrev_i32 v{TMP+19}, 31, v{TMP+18}
ds_add_u64 v{TMP+7}, v[{TMP+12}:{TMP+13}]
ds_add_u64 v{TMP+7}, v[{TMP+14}:{TMP+15}] offset:{CS}
ds_add_u64 v{TMP+10}, v[{TMP+16}:{TMP+17}]
ds_add_u64 v{TMP+10}, v[{TMP+18}:{TMP+19}] offset:{CS}
k3_fb_skip:
s_mov_b64 exec, s[62:63]
s_add_u32 s76, s76, 1024
s_cmp_lt_u32 s76, {T}
s_cbranch_scc1 k3_fb_loop
''')
    a('k3_done:')
    stamp()
    if opt.get('prof')=='k3':
        a('s_memrealtime s[94:95]')
        a('s_waitcnt lgkmcnt(0)')
        a('s_sub_u32 s94, s94, s92')
        a(f'v_writelane_b32 v{PV+1}, s94, 62')
        a('s_mov_b32 s101, s93')
        a('s_mov_b32 s53, s92')
        a(f'v_writelane_b32 v{PV+1}, s92, 61')
    a(f'''s_load_dwordx2 s[48:49], s[0:1], 40
s_load_dwordx2 s[50:51], s[0:1], 56
s_load_dwordx2 s[52:53], s[0:1], 64
s_load_dwordx2 s[54:55], s[0:1], 72
s_load_dwordx2 s[58:59], s[0:1], 80
s_waitcnt lgkmcnt(0)
s_load_dwordx4 s[64:67], s[48:49], 0
s_load_dwordx8 s[68:75], s[54:55], 0
s_load_dwordx8 s[76:83], s[58:59], 0
s_load_dwordx16 s[84:99], s[50:51], 0
s_load_dwordx16 s[8:23], s[52:53], 0
s_waitcnt vmcnt(0) lgkmcnt(0)
s_barrier
''')
    a('s_sub_u32 s61, 238, s60')
    a('s_max_i32 s61, s61, 1')
    a('s_lshl_b32 s61, s61, 23')
    if opt.get('prof')=='k3':
        a('s_memtime s[48:49]')
        a('s_waitcnt lgkmcnt(0)')
        a(f'v_writelane_b32 v{PV}, s48, 4')
    WR=84; WSB=8; WD=68; WU=76; CE=64
    for k in range(4):
        l=TMP; e8=TMP+1; e2=TMP+2
        a(f'v_add_u32 v{l}, {1024*k}, v{V_TID}')
        a(f'v_lshrrev_b32 v{e8}, 4, v{l}')
        a(f'v_lshlrev_b32 v{e8}, 12, v{e8}')
        a(f'v_and_b32 v{e2}, 15, v{l}')
        a(f'v_or_b32 v{e8}, v{e8}, v{e2}')
        a(f's_lshl_b32 s3, s56, 4')
        a(f'v_or_b32 v{e8}, s3, v{e8}')
        if k==3:
            a(f'v_cmp_gt_u32 vcc, 64, v{V_TID}')
            a(f's_and_saveexec_b64 s[62:63], vcc')
            a(f's_cbranch_execz k3_fin_skip')
        a(f'v_lshlrev_b32 v{e2}, 1, v{e8}')
        a(f'v_lshlrev_b32 v{e8}, 3, v{e8}')
        a(f'v_lshlrev_b32 v{l}, 3, v{l}')
        MM=TMP+4; DI=TMP+6; AC=TMP+8
        a(f'buffer_load_dwordx2 v[{MM}:{MM+1}], v{e8}, s[{S_M}:{S_M+3}], 0 offen')
        a(f'buffer_load_ushort v{DI}, v{e2}, s[{S_DI}:{S_DI+3}], 0 offen')
        a(f'v_add_u32 v{TMP+3}, {2*CS}, v{l}')
        a(f'ds_read_b64 v[{AC}:{AC+1}], v{l}')
        a(f'ds_read_b64 v[{AC+2}:{AC+3}], v{l} offset:{CS}')
        a(f'ds_read_b64 v[{AC+4}:{AC+5}], v{TMP+3}')
        a(f'ds_read_b64 v[{AC+6}:{AC+7}], v{TMP+3} offset:{CS}')
        a('s_waitcnt vmcnt(0) lgkmcnt(0)')
        SV=TMP+16
        for c in range(4):
            a(f'v_cvt_f32_i32 v{SV+c}, v{AC+2*c+1}')
            a(f'v_cvt_f32_u32 v{TMP+20}, v{AC+2*c}')
            a(f'v_mov_b32 v{TMP+21}, 0x4f800000')
            a(f'v_fma_f32 v{SV+c}, v{SV+c}, v{TMP+21}, v{TMP+20}')
            a(f'v_mul_f32 v{SV+c}, s61, v{SV+c}')
        a(f'v_lshlrev_b32 v{DI}, 16, v{DI}')
        RB=TMP+24
        for r in range(8):
            bf_to_v(a,TMP+20,CE,r)
            a(f'v_sub_f32 v{TMP+20}, v{DI}, v{TMP+20}')
            a(f'v_mul_f32 v{TMP+20}, v{TMP+20}, v{TMP+20}')
            a(f'v_mul_f32 v{TMP+20}, 0xc166d4ca, v{TMP+20}')
            a(f'v_exp_f32 v{RB+r}, v{TMP+20}')
        G=TMP+32; Hh=TMP+36; SD=TMP+40; U=TMP+44
        for c in range(4):
            for r in range(8):
                bf_to_v(a,TMP+20,WSB,r*4+c)
                a(f'v_mul_f32 v{G+c}, v{RB+r}, v{TMP+20}' if r==0 else f'v_fmac_f32 v{G+c}, v{RB+r}, v{TMP+20}')
                bf_to_v(a,TMP+21,WR,r*4+c)
                a(f'v_mul_f32 v{Hh+c}, v{RB+r}, v{TMP+21}' if r==0 else f'v_fmac_f32 v{Hh+c}, v{RB+r}, v{TMP+21}')
        for c in range(4):
            for j in range(4):
                bf_to_v(a,TMP+20,WD,j*4+c)
                a(f'v_mul_f32 v{SD+c}, v{SV+j}, v{TMP+20}' if j==0 else f'v_fmac_f32 v{SD+c}, v{SV+j}, v{TMP+20}')
            a(f'v_mul_f32 v{SD+c}, v{SD+c}, v{G+c}')
        for c in range(4):
            for j in range(4):
                bf_to_v(a,TMP+20,WU,j*4+c)
                a(f'v_mul_f32 v{U+c}, v{SD+j}, v{TMP+20}' if j==0 else f'v_fmac_f32 v{U+c}, v{SD+j}, v{TMP+20}')
        O=TMP+48
        a(f'v_lshlrev_b32 v{O}, 16, v{MM}')
        a(f'v_and_b32 v{O+1}, 0xffff0000, v{MM}')
        a(f'v_lshlrev_b32 v{O+2}, 16, v{MM+1}')
        a(f'v_and_b32 v{O+3}, 0xffff0000, v{MM+1}')
        for c in range(4): a(f'v_fmac_f32 v{O+c}, v{U+c}, v{Hh+c}')
        a(f'v_cvt_pk_bf16_f32 v{O+4}, v{O}, v{O+1}')
        a(f'v_cvt_pk_bf16_f32 v{O+5}, v{O+2}, v{O+3}')
        a(f'buffer_store_dwordx2 v[{O+4}:{O+5}], v{e8}, s[{S_O}:{S_O+3}], 0 offen')
    a('k3_fin_skip:')
    a('s_mov_b64 exec, -1')
    a('s_waitcnt vmcnt(0)')
    if opt.get('prof')=='k3':
        a('s_memtime s[48:49]')
        a('s_load_dwordx2 s[50:51], s[0:1], 104')
        a('s_waitcnt lgkmcnt(0)')
        a(f'v_writelane_b32 v{PV}, s48, 5')
        a('s_memrealtime s[48:49]')
        a('s_waitcnt lgkmcnt(0)')
        a(f'v_readlane_b32 s52, v{PV+1}, 61')
        a('s_nop 3')
        a('s_sub_u32 s48, s48, s52')
        a(f'v_writelane_b32 v{PV+1}, s48, 63')
        a(srd_off(36,50,M.FL_OFF+4096,4096*512))
        a('s_lshl_b32 s50, s2, 4')
        a('s_add_u32 s50, s50, s57')
        a('s_lshl_b32 s50, s50, 9')
        a(f'v_lshlrev_b32 v{TMP}, 2, v{V_LANE}')
        a(f'buffer_store_dword v{PV}, v{TMP}, s[36:39], s50 offen')
        a(f'buffer_store_dword v{PV+1}, v{TMP}, s[36:39], s50 offen offset:256')
        a('s_waitcnt vmcnt(0)')
    a('k3_end:')
    a.end(min(128,TMP+57), 102)
```

```python
import sys
from asmlib import *
NAME="gather_scatter__molecular_angular_gemnet__graph"
E=800000; T=25600000
CH1=20000
NCH1=1280
CAP1U=5200
import os
SWAP=int(os.environ.get('SWAP','0'))
RND=7
NSLOT=256*RND
CAP2U=8320
if SWAP:
    Q_OFF=0
    PK_OFF=NSLOT*CAP2U*16
    M1_OFF=PK_OFF+NCH1*CAP1U*24
else:
    PK_OFF=0
    Q_OFF=NCH1*CAP1U*24
    M1_OFF=Q_OFF+NSLOT*CAP2U*16
M2_OFF=M1_OFF+NCH1*1024
MX_OFF=M2_OFF+NSLOT*1024
FL_OFF=MX_OFF+1024
WS_END=FL_OFF+128
assert WS_END<=409600000
OOB=0x80000000
BIG=0x30000

def dpp_scan(a, v):
    for sh in (1,2,4,8):
        a(f'v_add_u32_dpp v{v}, v{v}, v{v} row_shr:{sh} row_mask:0xf bank_mask:0xf bound_ctrl:0')
    a(f'v_add_u32_dpp v{v}, v{v}, v{v} row_bcast:15 row_mask:0xa bank_mask:0xf')
    a(f'v_add_u32_dpp v{v}, v{v}, v{v} row_bcast:31 row_mask:0xc bank_mask:0xf')
def dpp_max(a, v):
    for sh in (1,2,4,8):
        a(f'v_max_u32_dpp v{v}, v{v}, v{v} row_shr:{sh} row_mask:0xf bank_mask:0xf bound_ctrl:0')
    a(f'v_max_u32_dpp v{v}, v{v}, v{v} row_bcast:15 row_mask:0xa bank_mask:0xf')
    a(f'v_max_u32_dpp v{v}, v{v}, v{v} row_bcast:31 row_mask:0xc bank_mask:0xf')

def k1(a, opt):
    a.begin('part_kernel')
    HIST=[0,1024]; OFFS=2048; MAXW=3072; STG=3088
    S_IN,S_OUT,S_ANG,S_PK,S_M1,S_M,S_MX=8,12,16,20,28,32,36
    ld=' nt'
    st=opt.get('k1_st',' sc1')
    V_TID=0; V_O16=1; V_O8=2; V_KF=3; V_Z=4
    def IN(s,j): return 8+s*50+j
    def OU(s,j): return 8+s*50+20+j
    def AN(s,j): return 8+s*50+40+j
    TMP=108
    V_O16M=124; V_O8M=125; V_L16=126; V_ONE=127
    NT=16
    import k23
    a('s_cmp_ge_u32 s2, 256\ns_cbranch_scc1 k1_end')
    stamp,stt=k23.mk_stamp(a,opt,'k1',[122,123],sreg=90)
    stamp('rs')
    stamp()
    a(f'''
s_load_dwordx2 s[4:5], s[0:1], 8
s_load_dwordx2 s[6:7], s[0:1], 16
s_load_dwordx2 s[42:43], s[0:1], 32
s_load_dwordx2 s[44:45], s[0:1], 104
s_load_dwordx2 s[46:47], s[0:1], 0
s_load_dwordx2 s[48:49], s[0:1], 48
s_load_dwordx2 s[64:65], s[0:1], 96
v_lshlrev_b32 v{V_O16}, 4, v{V_TID}
v_lshlrev_b32 v{V_O8}, 3, v{V_TID}
v_mov_b32 v{V_Z}, 0
v_mov_b32 v{V_Z+1}, 0
v_mov_b32 v{V_Z+2}, 0
v_mov_b32 v{V_Z+3}, 0
v_mov_b32 v{V_ONE}, 1
v_and_b32 v{V_L16}, 63, v{V_TID}
v_lshlrev_b32 v{V_L16}, 4, v{V_L16}
v_mov_b32 v{TMP}, {OOB}
v_cmp_gt_u32 vcc, 904, v{V_TID}
s_mov_b64 s[56:57], vcc
v_cndmask_b32 v{V_O16M}, v{TMP}, v{V_O16}, vcc
v_cndmask_b32 v{V_O8M}, v{TMP}, v{V_O8}, vcc
v_lshrrev_b32 v{TMP}, 6, v{V_TID}
v_readfirstlane_b32 s58, v{TMP}
s_waitcnt lgkmcnt(0)
s_load_dword s40, s[48:49], 0
{srd(S_IN,4,T*4)}
{srd(S_OUT,6,T*4)}
{srd(S_ANG,42,T*2)}
{srd(S_M,46,E*8)}
{srd_off(S_M1,44,M1_OFF,NCH1*1024)}
{srd_off(S_MX,44,MX_OFF,1028)}
s_add_u32 s52, s44, {PK_OFF}
s_addc_u32 s53, s45, 0
s_mov_b32 s{S_PK}, s52
s_and_b32 s{S_PK+1}, s53, 0xffff
s_mov_b32 s{S_PK+2}, 0
s_mov_b32 s{S_PK+3}, 0x00020000
s_mul_i32 s59, s2, 400000
{srd(24,64,256)}
''')
    a('s_mul_i32 s60, s2, 5')
    def loads(s,k):
        for r in range(5):
            a(f's_add_u32 s50, s59, {k*80000+r*16384}')
            a(f's_lshr_b32 s51, s50, 1')
            vo=V_O16 if r<4 else V_O16M; va=V_O8 if r<4 else V_O8M
            a(f'buffer_load_dwordx4 v[{IN(s,4*r)}:{IN(s,4*r)+3}], v{vo}, s[{S_IN}:{S_IN+3}], s50 offen{ld}')
            a(f'buffer_load_dwordx4 v[{OU(s,4*r)}:{OU(s,4*r)+3}], v{vo}, s[{S_OUT}:{S_OUT+3}], s50 offen{ld}')
            a(f'buffer_load_dwordx2 v[{AN(s,2*r)}:{AN(s,2*r)+1}], v{va}, s[{S_ANG}:{S_ANG+3}], s51 offen{ld}')
    loads(0,0)
    a(f's_mul_i32 s50, s2, 25000')
    for k in range(4):
        a(f's_add_u32 s51, s50, {k*8192}')
        a(f'buffer_load_dwordx2 v[{TMP+2*k}:{TMP+2*k+1}], v{V_O8}, s[{S_M}:{S_M+3}], s51 offen')
    a(f'v_cmp_gt_u32 vcc, 256, v{V_TID}')
    a(f's_and_saveexec_b64 s[62:63], vcc')
    a(f'ds_write_b128 v{V_O16}, v[{V_Z}:{V_Z+3}]')
    a(f's_mov_b64 exec, s[62:63]')
    a(f'''s_waitcnt lgkmcnt(0)
s_lshl_b32 s40, s40, 16
v_mov_b32 v{V_KF}, 0x3e22f983
v_mul_f32 v{V_KF}, s40, v{V_KF}
s_barrier''')
    def phaseD(kk):
        ss=kk&1
        D0=8+ss*50
        for q in range(8):
            t=TMP+q
            a(f'v_add_u32 v{t}, {q*16384}, v{V_O16}')
            a(f'ds_read_b128 v[{D0+4*q}:{D0+4*q+3}], v{t} offset:{STG}')
        for q in range(8):
            a(f's_waitcnt lgkmcnt({7-q})')
            stp=' nt' if kk<int(opt.get('k1_ntk',0)) else st
            a(f'buffer_store_dwordx4 v[{D0+4*q}:{D0+4*q+3}], v{TMP+q}, s[{S_PK}:{S_PK+3}], 0 offen{stp}')
    for k in range(5):
        s=k&1; p=k&1
        H=HIST[p]; HO=HIST[1-p]
        a(f'; ---- chunk {k} ----')
        stamp()
        LP=int(opt.get('k1_lp',2)); DA=int(opt.get('k1_da',0))
        if k==0 and int(opt.get('k1_l0',0)): LP=0
        if k<4 and LP==0: loads(1-s,k+1)
        if k==0:
            a('s_waitcnt vmcnt(15)' if LP==0 else 's_waitcnt vmcnt(0)')
            for q in range(8): a(f'v_and_b32 v{TMP+q}, 0x7fff7fff, v{TMP+q}')
            for q in range(1,8): a(f'v_pk_max_u16 v{TMP}, v{TMP}, v{TMP+q}')
            a(f'v_lshrrev_b32 v{TMP+1}, 16, v{TMP}')
            a(f'v_and_b32 v{TMP}, 0xffff, v{TMP}')
            a(f'v_max_u32 v{TMP}, v{TMP}, v{TMP+1}')
            dpp_max(a,TMP)
            a(f'v_mov_b32 v{TMP+1}, {MAXW}')
            a(f's_mov_b64 s[62:63], exec')
            a(f's_mov_b32 exec_lo, 0')
            a(f's_mov_b32 exec_hi, 0x80000000')
            a(f'ds_max_u32 v{TMP+1}, v{TMP}')
            a(f's_mov_b64 exec, s[62:63]')
        elif DA: a('s_waitcnt vmcnt(0)')
        elif k<4: a('s_waitcnt vmcnt(23)' if LP==0 else 's_waitcnt vmcnt(8)')
        else: a('s_waitcnt vmcnt(8)')
        stamp()
        def groupA_issue(r):
            ta=TMP+(r&1)*4
            for q in range(4):
                j=4*r+q; t0=TMP+8; t1=TMP+9
                a(f'v_lshrrev_b32 v{t0}, 8, v{IN(s,j)}')
                a(f'v_lshrrev_b32 v{t1}, 2, v{IN(s,j)}')
                a(f'v_bfi_b32 v{t0}, 15, v{IN(s,j)}, v{t0}')
                a(f'v_lshl_or_b32 v{IN(s,j)}, v{OU(s,j)}, 12, v{t0}')
                a(f'v_and_b32 v{OU(s,j)}, 0x3fc, v{t1}')
                a(f'ds_add_rtn_u32 v{ta+q}, v{OU(s,j)}, v{V_ONE} offset:{H}')
            for h in range(2):
                A=AN(s,2*r+h); c0=TMP+10; c1=TMP+11
                a(f'v_lshlrev_b32 v{c0}, 16, v{A}')
                a(f'v_and_b32 v{c1}, 0xffff0000, v{A}')
                a(f'v_mul_f32 v{c0}, v{V_KF}, v{c0}')
                a(f'v_mul_f32 v{c1}, v{V_KF}, v{c1}')
                a(f'v_fract_f32 v{c0}, v{c0}')
                a(f'v_fract_f32 v{c1}, v{c1}')
                a(f'v_cos_f32 v{c0}, v{c0}')
                a(f'v_cos_f32 v{c1}, v{c1}')
                a(f'v_cvt_pk_f16_f32 v{A}, v{c0}, v{c1}')
        def groupA_fin(r):
            ta=TMP+(r&1)*4
            for q in range(4):
                j=4*r+q
                a(f'v_lshl_or_b32 v{OU(s,j)}, v{ta+q}, 10, v{OU(s,j)}')
        groupA_issue(0)
        for r in range(1,4):
            groupA_issue(r)
            a('s_waitcnt lgkmcnt(4)')
            groupA_fin(r-1)
        a('s_waitcnt lgkmcnt(0)')
        groupA_fin(3)
        a('s_mov_b64 exec, s[56:57]')
        groupA_issue(4)
        a('s_waitcnt lgkmcnt(0)')
        groupA_fin(4)
        a('s_mov_b64 exec, -1')
        if DA and k>=1: phaseD(k-1)
        if k<4 and LP==1: loads(1-s,k+1)
        stamp()
        a('s_barrier')
        stamp()
        if k<4 and LP==2:
            if opt.get('k1_sync'):
                LIM=int(opt.get('k1_sync'))
                Lw=a.label('k1sy'); Lp=a.label('k1sp'); Ld=a.label('k1sd')
                a('s_cmp_lg_u32 s58, 0')
                a(f's_cbranch_scc1 {Lw}')
                a(f's_mov_b64 s[62:63], exec')
                a('s_mov_b64 exec, 1')
                a(f'v_mov_b32 v{TMP}, {4*k}')
                a(f'buffer_atomic_add v{V_ONE}, v{TMP}, s[24:27], 0 offen sc1')
                a('s_mov_b32 s66, 0')
                a(f'{Lp}:')
                a(f'buffer_load_dword v{TMP+1}, v{TMP}, s[24:27], 0 offen sc0 sc1')
                a('s_waitcnt vmcnt(0)')
                a(f'v_readfirstlane_b32 s67, v{TMP+1}')
                a('s_nop 1')
                a('s_cmp_ge_u32 s67, 256')
                a(f's_cbranch_scc1 {Ld}')
                a('s_add_u32 s66, s66, 1')
                a(f's_cmp_lt_u32 s66, {LIM}')
                a(f's_cbranch_scc1 {Lp}')
                a(f'{Ld}:')
                a('s_mov_b64 exec, s[62:63]')
                a(f'{Lw}:')
                a('s_barrier')
            loads(1-s,k+1)
        c=TMP; n=TMP+4; e=TMP+8; tot=TMP+12; inc=TMP+13
        a(f'ds_read_b128 v[{c}:{c+3}], v{V_L16} offset:{H}')
        a('s_waitcnt lgkmcnt(0)')
        for q in range(4):
            a(f'v_add_u32 v{n+q}, 3, v{c+q}')
            a(f'v_lshrrev_b32 v{n+q}, 2, v{n+q}')
        a(f'v_add_u32 v{e+2}, v{n}, v{n+1}')
        a(f'v_add_u32 v{e+3}, v{e+2}, v{n+2}')
        a(f'v_add_u32 v{tot}, v{e+3}, v{n+3}')
        a(f'v_mov_b32 v{inc}, v{tot}')
        dpp_scan(a,inc)
        a(f'v_sub_u32 v{e}, v{inc}, v{tot}')
        a(f'v_add_u32 v{e+1}, v{e}, v{n}')
        a(f'v_add_u32 v{e+2}, v{e}, v{e+2}')
        a(f'v_add_u32 v{e+3}, v{e}, v{e+3}')
        a(f'v_readlane_b32 s61, v{inc}, 63')
        for q in range(4): a(f'v_lshl_or_b32 v{n+q}, v{n+q}, 16, v{e+q}')
        for q in range(4): a(f'v_mul_u32_u24 v{e+q}, 24, v{e+q}')
        a(f'ds_write_b128 v{V_L16}, v[{e}:{e+3}] offset:{OFFS}')
        a(f'ds_write_b128 v{V_L16}, v[{V_Z}:{V_Z+3}] offset:{HO}')
        L=a.label('k1w0')
        a('s_cmp_lg_u32 s58, 0')
        a(f's_cbranch_scc1 {L}')
        a(f's_add_u32 s50, s60, {k}')
        a('s_lshl_b32 s50, s50, 10')
        a(f'buffer_store_dwordx4 v[{n}:{n+3}], v{V_L16}, s[{S_M1}:{S_M1+3}], s50 offen')
        if k==0:
            a(f'v_mov_b32 v{c}, {MAXW}')
            a(f'ds_read_b32 v{c+1}, v{c}')
            a('s_lshl_b32 s50, s2, 2')
            a(f'v_mov_b32 v{c}, 0')
            a('s_waitcnt lgkmcnt(0)')
            a(f's_mov_b64 s[62:63], exec')
            a('s_mov_b64 exec, 1')
            a(f'buffer_store_dword v{c+1}, v{c}, s[{S_MX}:{S_MX+3}], s50 offen')
            a(f'buffer_store_dword v{c}, v{c}, s[{S_MX}:{S_MX+3}], 0 offen offset:1024')
            a('s_mov_b64 exec, s[62:63]')
        a(f'{L}:')
        L=a.label('k1w1')
        a('s_cmp_lg_u32 s58, 1')
        a(f's_cbranch_scc1 {L}')
        for q in range(4):
            b=TMP+12; kk=TMP+13; t=TMP+15
            a(f'v_lshrrev_b32 v{b}, 2, v{c+q}')
            a(f'v_mad_u32_u24 v{b}, v{b}, 24, v{e+q}')
            a(f'v_and_b32 v{kk}, 3, v{c+q}')
            a(f'v_add_u32 v{kk}, -1, v{kk}')
            for slot in (1,2,3):
                a(f'v_cmp_gt_u32 vcc, {slot}, v{kk}')
                a(f'v_mov_b32 v{t}, {BIG}')
                a(f'v_cndmask_b32 v{t}, v{t}, v{b}, vcc')
                a(f'ds_write_b16 v{t}, v{V_Z} offset:{STG+16+2*slot}')
        a(f'{L}:')
        a(f's_add_u32 s50, s60, {k}')
        a(f's_mul_i32 s51, s50, {CAP1U*24}')
        a(f's_add_u32 s{S_PK}, s52, s51')
        a(f's_addc_u32 s{S_PK+1}, s53, 0')
        a(f's_and_b32 s{S_PK+1}, s{S_PK+1}, 0xffff')
        a(f's_mul_i32 s{S_PK+2}, s61, 24')
        a(f's_add_u32 s{S_PK+2}, s{S_PK+2}, 127')
        a(f's_and_b32 s{S_PK+2}, s{S_PK+2}, 0xffffff80')
        a('s_waitcnt lgkmcnt(0)')
        if k<4 and LP==4: loads(1-s,k+1)
        stamp()
        def groupC_read(js):
            for i,j in enumerate(js):
                t=TMP+i
                a(f'v_and_b32 v{t}, 0x3ff, v{OU(s,j)}')
                a(f'ds_read_b32 v{t}, v{t} offset:{OFFS}')
        def groupC_write(js,waits):
            for i,j in enumerate(js):
                t=TMP+i; u=TMP+8; w=TMP+9
                a(f'v_lshrrev_b32 v{OU(s,j)}, 10, v{OU(s,j)}')
                a(f'v_mad_u32_u24 v{t}, v{OU(s,j)}, 6, v{t}')
                a(f'v_and_b32 v{u}, 3, v{OU(s,j)}')
                a(f'v_mad_i32_i24 v{w}, v{u}, -2, v{t}')
                a(f'v_mad_i32_i24 v{t}, v{u}, -4, v{t}')
                a(f'ds_write_b32 v{w}, v{IN(s,j)} offset:{STG}')
                A=AN(s,j//2)
                if j&1: a(f'ds_write_b16_d16_hi v{t}, v{A} offset:{STG+16}')
                else:   a(f'ds_write_b16 v{t}, v{A} offset:{STG+16}')
        for g in range(2):
            js=list(range(8*g,8*g+8))
            groupC_read(js)
            a('s_waitcnt lgkmcnt(0)')
            groupC_write(js,False)
        a('s_mov_b64 exec, s[56:57]')
        js=list(range(16,20))
        groupC_read(js)
        a('s_waitcnt lgkmcnt(0)')
        groupC_write(js,False)
        a('s_mov_b64 exec, -1')
        a('s_waitcnt lgkmcnt(0)')
        if k<4 and LP==5: loads(1-s,k+1)
        stamp()
        a('s_barrier')
        stamp()
        if k<4 and LP==3: loads(1-s,k+1)
        if not DA or k==4: phaseD(k)
    stamp()
    a('s_waitcnt vmcnt(0) lgkmcnt(0)')
    stamp()
    if opt.get('prof')=='k1':
        stamp('re')
        a(srd_off(8,44,FL_OFF+4096,4096*512))
        a('s_lshl_b32 s50, s2, 4')
        a('s_add_u32 s50, s50, s58')
        a('s_lshl_b32 s50, s50, 9')
        a(f'v_and_b32 v{TMP}, 63, v{V_TID}')
        a(f'v_lshlrev_b32 v{TMP}, 2, v{TMP}')
        a(f'buffer_store_dword v122, v{TMP}, s[8:11], s50 offen')
        a('s_waitcnt vmcnt(0)')
    a('k1_end:')
    a.end(128, 96)

def build(opt={}, with_meta=False, which=('k1','k2','k3')):
    import k23, k3 as K3
    a=Asm()
    if 'k1' in which: k1(a,opt)
    if 'k2' in which: k23.k2(a,opt)
    if 'k3' in which and not opt.get('fuse23'): K3.k3(a,opt)
    hdr=[]
    for l in open('cdna_kernels/%s.s.ref'%NAME).read().split('\n'):
        if l.startswith('; @launch') : break
        if l.startswith('; Override') or l.startswith('; grid='): continue
        hdr.append(l)
    hdr.append('; @launch kernel=part_kernel grid=(256,1,1) block=(1024,1,1) lds=143360')
    hdr.append('; @launch kernel=gath_kernel grid=(256,1,1) block=(1024,1,1) lds=161280')
    hdr.append('; @launch kernel=acc_kernel grid=(256,1,1) block=(1024,1,1) lds=100368')
    return a.text(header_lines=hdr, with_meta=with_meta), a

if __name__=='__main__':
    pass
```
